```python
import torch

def _softmax(x, axis=-1):
    return torch.softmax(x, dim=axis)
def _gelu(x):
    return torch.nn.functional.gelu(x, approximate="tanh")
def _silu(x):
    return torch.nn.functional.silu(x)
def _sigmoid(x):
    return torch.sigmoid(x)
def _layernorm(x, axis=-1, eps=1e-5):
    m = x.mean(dim=axis, keepdim=True)
    v = x.var(dim=axis, keepdim=True, unbiased=False)
    return (x - m) / torch.sqrt(v + eps)
def _scatter_add(tgt, idx, src, axis=0):
    return tgt.clone().index_add_(axis, idx, src)
def _segment_sum(src, seg, n):
    out = torch.zeros((n,) + src.shape[1:], dtype=src.dtype)
    return out.index_add_(0, seg, src)
def _pad(x, pw):
    flat = tuple(v for pair in reversed(pw) for v in pair)
    return torch.nn.functional.pad(x, flat)

kernel_name = 'sequential_preLN__ssm_conv_s4__geglu_ffn__prompt'

def setup_inputs():

    _w = (lambda a: (lambda t: t.to(torch.bfloat16) if t.is_floating_point() else t)(torch.as_tensor(a)))
    def _A_setup():
        B, L, D, N = 1, 2048, 640, 128
        A_re = -(lambda _x: torch.exp(torch.as_tensor(_x)))((lambda *s: torch.randn(*s, dtype=torch.bfloat16) * 6.4)(D, N))
        A_im = torch.pi * (lambda *s: torch.randn(*s, dtype=torch.bfloat16) * 0.05)(D, N)
        B_re = (lambda *s: torch.randn(*s, dtype=torch.bfloat16) * 0.05)(D, N)
        B_im = (lambda *s: torch.randn(*s, dtype=torch.bfloat16) * 0.05)(D, N)
        C_re = (lambda *s: torch.randn(*s, dtype=torch.bfloat16) * 0.05)(D, N)
        C_im = (lambda *s: torch.randn(*s, dtype=torch.bfloat16) * 0.05)(D, N)
        log_dt = (lambda *s: torch.randn(*s, dtype=torch.bfloat16) * 0.05)(D) * 0.5 - 4.0
        Dskip = (lambda *s: torch.randn(*s, dtype=torch.bfloat16) * 0.05)(D)
        return {
            "u": _w((lambda *s: torch.randn(*s, dtype=torch.bfloat16) * 0.05)(B, L, D)),
            "A_re": _w(A_re),
            "A_im": _w(A_im),
            "B_re": _w(B_re),
            "B_im": _w(B_im),
            "C_re": _w(C_re),
            "C_im": _w(C_im),
            "log_dt": _w(log_dt),
            "Dskip": _w(Dskip),
        }
    _A_in = _A_setup()

    def _B_setup():
        B, S, D, F = 1, 2048, 640, 1728
        return {
            "x": _w((lambda *s: torch.randn(*s, dtype=torch.bfloat16) * 0.05)(B, S, D)),
            "w_gate": _w((lambda *s: torch.randn(*s, dtype=torch.bfloat16) * 0.05)(D, F)),
            "w_up": _w((lambda *s: torch.randn(*s, dtype=torch.bfloat16) * 0.05)(D, F)),
            "w_down": _w((lambda *s: torch.randn(*s, dtype=torch.bfloat16) * 0.05)(F, D)),
        }
    _B_in = _B_setup()

    return {
        "A_u": _A_in["u"],
        "A_A_re": _A_in["A_re"],
        "A_A_im": _A_in["A_im"],
        "A_B_re": _A_in["B_re"],
        "A_B_im": _A_in["B_im"],
        "A_C_re": _A_in["C_re"],
        "A_C_im": _A_in["C_im"],
        "A_log_dt": _A_in["log_dt"],
        "A_Dskip": _A_in["Dskip"],
        "B_x": _B_in["x"],
        "B_w_gate": _B_in["w_gate"],
        "B_w_up": _B_in["w_up"],
        "B_w_down": _B_in["w_down"],
    }

def reference(A_u, A_A_re, A_A_im, A_B_re, A_B_im, A_C_re, A_C_im, A_log_dt, A_Dskip, B_x, B_w_gate, B_w_up, B_w_down):
    def _A_ref(u, A_re, A_im, B_re, B_im, C_re, C_im, log_dt, Dskip):
        Bsz, L, D = u.shape
        dt = torch.exp(log_dt)[:, None]
        A = A_re + 1j * A_im
        Bc = B_re + 1j * B_im
        Cc = C_re + 1j * C_im
        logdA = dt * A
        dB = dt * Bc
        l = (lambda x, dt: x.to(dt))(torch.arange(L), A_re.dtype)
        P = torch.exp(logdA[:, :, None] * l[None, None, :])
        K = torch.einsum("dn,dnl,dn->dl", Cc, P, dB).real
        L2 = 2 * L
        Kp = _pad(K, ((0, 0), (0, L)))
        up = (lambda x, *d: x.permute(*d))(u, 0, 2, 1)
        up = _pad(up, ((0, 0), (0, 0), (0, L)))
        Kf = (lambda x, axes=(-2,-1): torch.fft.rfft2(x.float(), dim=axes))(Kp[:, None, :], axes=(-2, -1))
        Uf = (lambda x, axes=(-2,-1): torch.fft.rfft2(x.float(), dim=axes))(up[:, :, None, :], axes=(-2, -1))
        Yf = Uf * Kf[None, :, :, :]
        y = (lambda x, s, axes=(-2,-1): torch.fft.irfft2(x, s=s, dim=axes).to(torch.bfloat16))(Yf, (1, L2), axes=(-2, -1))[:, :, 0, :L]
        y = (lambda x, *d: x.permute(*d))(y, 0, 2, 1) + u * Dskip[None, None, :]
        return y

    def _B_ref(x, w_gate, w_up, w_down):
        return (_gelu(x @ w_gate) * (x @ w_up)) @ w_down

    x = A_u
    h = x + _A_ref(_layernorm(x, axis=-1), A_A_re, A_A_im, A_B_re, A_B_im, A_C_re, A_C_im, A_log_dt, A_Dskip)
    h2 = h + _B_ref(_layernorm(h, axis=-1), B_w_gate, B_w_up, B_w_down)
    return h2
```

```python
import struct
HEADER = open('sequential_preLN__ssm_conv_s4__geglu_ffn__prompt.s.ref').read().split('; Override launch')[0]
KARG = dict(x=0, Are=8, Aim=16, Bre=24, Bim=32, Cre=40, Cim=48, logdt=56, Dskip=64, Bx=72, Wg=80, Wu=88, Wd=96, out=104, dbg=112, ws=120)
def f2u(f): return struct.unpack('<I', struct.pack('<f', f))[0]
def fl(f): return '0x%08x' % f2u(f)
class Kern:
    def __init__(self, name, grid, block=256, lds=0, vgpr=128, agpr=0, sgpr=102):
        self.name, self.grid, self.block, self.lds = name, grid, block, lds
        self.vgpr, self.agpr, self.sgpr = vgpr, agpr, sgpr
        self.L = []
        self._lab = 0
    def __call__(self, s):
        for l in s.strip('\n').split('\n'):
            l = l.strip()
            if l: self.L.append(l if l.endswith(':') else '  ' + l)
    def lab(self, p='L'):
        self._lab += 1
        return f'{self.name}_{p}{self._lab}'
    def ldptr(self, sreg, key):
        self(f's_load_dwordx2 s[{sreg}:{sreg+1}], s[0:1], {KARG[key]}')
    def srd(self, s, nbytes, base=None, off=0):
        if base is not None:
            if off:
                self(f's_add_u32 s{s}, s{base}, {hex(off)}\ns_addc_u32 s{s+1}, s{base+1}, 0')
            else:
                self(f's_mov_b32 s{s}, s{base}\ns_mov_b32 s{s+1}, s{base+1}')
        elif off:
            self(f's_add_u32 s{s}, s{s}, {hex(off)}\ns_addc_u32 s{s+1}, s{s+1}, 0')
        self(f's_mov_b32 s{s+2}, {hex(nbytes)}\ns_mov_b32 s{s+3}, 0x00020000')
    def text(self):
        return (f'.globl {self.name}\n.p2align 8\n.type {self.name},@function\n{self.name}:\n' + '\n'.join(self.L) + '\n')
    def desc(self):
        acc = (self.vgpr + 3) // 4 * 4
        tot = acc + self.agpr if self.agpr else self.vgpr
        return (f'.p2align 6\n.amdhsa_kernel {self.name}\n  .amdhsa_next_free_vgpr {tot}\n  .amdhsa_next_free_sgpr {self.sgpr}\n'
                f'  .amdhsa_accum_offset {acc}\n  .amdhsa_group_segment_fixed_size 0\n  .amdhsa_kernarg_size 128\n'
                f'  .amdhsa_user_sgpr_count 2\n  .amdhsa_user_sgpr_kernarg_segment_ptr 1\n  .amdhsa_system_sgpr_workgroup_id_x 1\n'
                f'.end_amdhsa_kernel\n')
def build(kerns, launches=None, single=False):
    launches = launches or kerns
    s = HEADER
    if single:
        k = kerns[0]
        s += f'; @launch grid=({k.grid},1,1) block=({k.block},1,1) lds={k.lds}\n'
    else:
        for k in launches:
            s += f'; @launch kernel={k.name} grid=({k.grid},1,1) block=({k.block},1,1) lds={k.lds}\n'
    s += '.amdgcn_target "amdgcn-amd-amdhsa--gfx950"\n.text\n'
    for k in kerns: s += k.text()
    s += '.section .rodata,"a"\n'
    for k in kerns: s += k.desc()
    return s
def bf16_rne(k, dst, src, tmp):
    k(f'''v_bfe_u32 v{tmp}, v{src}, 16, 1
    v_add3_u32 v{dst}, v{src}, v{tmp}, s_rnd
    v_and_b32 v{dst}, 0xffff0000, v{dst}''')
```

```python
import sys, math
from asmlib import *
T, D, F, N = 2048, 640, 1728, 128
WS_U, WS_K, WS_H, WS_U2, WS_ACT = 0, 4<<20, 12<<20, 16<<20, 20<<20

def wavesum(k, v, t1, t2):
    for m in (1, 2, 4, 8, 16, 32):
        k(f'v_xor_b32 v{t1}, {m*4}, v{t2}\nds_bpermute_b32 v{t1}, v{t1}, v{v}\ns_waitcnt lgkmcnt(0)\nv_add_f32 v{v}, v{v}, v{t1}')
def rnd(k, v):
    k(f'v_cvt_pk_bf16_f32 v{v}, v{v}, v{v}\nv_and_b32 v{v}, 0xffff0000, v{v}')

def k_ln(name, src_key, src_off, dst_off):
    k = Kern(name, 512, 256, 0, vgpr=40)
    k('s_cmp_ge_u32 s2, 512\ns_cbranch_scc1 ' + name + '_end')
    k.ldptr(4, src_key); k.ldptr(8, 'ws'); k('s_waitcnt lgkmcnt(0)')
    k.srd(4, T*D*2, off=src_off); k.srd(8, T*D*2, off=dst_off)
    k('''v_lshrrev_b32 v1, 6, v0
    v_and_b32 v2, 63, v0
    s_lshl_b32 s3, s2, 2
    v_add_u32 v1, s3, v1
    s_movk_i32 s12, 1280
    v_mul_lo_u32 v1, v1, s12
    v_lshlrev_b32 v2, 2, v2
    v_add_u32 v1, v1, v2''')
    for j in range(5): k(f'buffer_load_dword v{10+j}, v1, s[4:7], 0 offen offset:{j*256}')
    k('s_waitcnt vmcnt(0)')
    for j in range(5):
        k(f'v_lshlrev_b32 v{20+2*j}, 16, v{10+j}\nv_and_b32 v{21+2*j}, 0xffff0000, v{10+j}')
    k('v_mov_b32 v3, v20')
    for j in range(1, 10): k(f'v_add_f32 v3, v3, v{20+j}')
    wavesum(k, 3, 4, 2)
    k(f'v_mul_f32 v3, {fl(1/640)}, v3')
    k('v_mov_b32 v5, 0')
    for j in range(10): k(f'v_sub_f32 v6, v{20+j}, v3\nv_fma_f32 v5, v6, v6, v5')
    wavesum(k, 5, 4, 2)
    k(f'v_mul_f32 v5, {fl(1/640)}, v5'); rnd(k, 5)
    k(f'v_add_f32 v5, {fl(1e-5)}, v5'); rnd(k, 5)
    k('v_sqrt_f32 v5, v5\ns_nop 1'); rnd(k, 5)
    rnd(k, 3)
    k('v_rcp_f32 v7, v5\ns_nop 1')
    for j in range(10):
        k(f'v_sub_f32 v{20+j}, v{20+j}, v3'); rnd(k, 20+j)
        k(f'v_mul_f32 v{20+j}, v{20+j}, v7')
    for j in range(5):
        k(f'v_cvt_pk_bf16_f32 v{10+j}, v{20+2*j}, v{21+2*j}\nbuffer_store_dword v{10+j}, v1, s[8:11], 0 offen offset:{j*256}')
    k(name + '_end:\ns_endpgm')
    return k

def k_kgen():
    name = 'kgen_kernel'
    k = Kern(name, 640*8, 256, 2048, vgpr=40)
    k(f's_cmp_ge_u32 s2, {640*8}\ns_cbranch_scc1 {name}_end')
    names = ['Are', 'Aim', 'Bre', 'Bim', 'Cre', 'Cim']
    for i, n in enumerate(names): k.ldptr(4+4*i, n)
    k.ldptr(28, 'logdt'); k.ldptr(32, 'ws'); k('s_waitcnt lgkmcnt(0)')
    for i in range(6): k.srd(4+4*i, D*N*2)
    k.srd(28, D*2); k.srd(32, D*T*4, off=WS_K)
    k('''s_lshr_b32 s36, s2, 3
    s_and_b32 s37, s2, 7
    v_and_b32 v1, 127, v0
    s_lshl_b32 s3, s36, 7
    v_add_u32 v2, s3, v1
    v_lshlrev_b32 v2, 1, v2
    s_lshl_b32 s3, s36, 1
    v_mov_b32 v3, s3''')
    for i in range(6): k(f'buffer_load_ushort v{10+i}, v2, s[{4+4*i}:{7+4*i}], 0 offen')
    k('buffer_load_ushort v16, v3, s[28:31], 0 offen\ns_waitcnt vmcnt(0)')
    for i in range(7): k(f'v_lshlrev_b32 v{10+i}, 16, v{10+i}')
    k(f'v_mul_f32 v16, {fl(math.log2(math.e))}, v16\nv_exp_f32 v16, v16\ns_nop 1'); rnd(k, 16)
    k(f'''v_mul_f32 v12, v12, v16
    v_mul_f32 v13, v13, v16
    v_mul_f32 v20, v10, v16
    v_mul_f32 v20, {fl(math.log2(math.e))}, v20
    v_mul_f32 v21, v11, v16
    v_mul_f32 v21, {fl(1/(2*math.pi))}, v21
    v_mul_f32 v22, v14, v12
    v_mul_f32 v4, v15, v13
    v_sub_f32 v22, v22, v4
    v_mul_f32 v23, v14, v13
    v_fma_f32 v23, v15, v12, v23
    v_lshlrev_b32 v4, 4, v1
    ds_write_b128 v4, v[20:23]
    s_lshl_b32 s3, s37, 8
    v_add_u32 v5, s3, v0
    v_cvt_f32_u32 v6, v5''')
    rnd(k, 6)
    k(f'''v_mov_b32 v7, 0
    v_mov_b32 v8, 0
    s_mov_b32 s38, 0
    s_waitcnt lgkmcnt(0)
    s_barrier
    {name}_loop:
    ds_read_b128 v[20:23], v8
    v_add_u32 v8, 16, v8
    s_waitcnt lgkmcnt(0)
    v_mul_f32 v24, v20, v6
    v_exp_f32 v24, v24
    v_mul_f32 v25, v21, v6
    v_fract_f32 v25, v25
    v_cos_f32 v26, v25
    v_sin_f32 v27, v25
    s_nop 1
    v_mul_f32 v26, v26, v22
    v_fma_f32 v26, -v27, v23, v26
    v_fma_f32 v7, v24, v26, v7
    s_add_u32 s38, s38, 1
    s_cmp_lt_u32 s38, 128
    s_cbranch_scc1 {name}_loop
    s_lshl_b32 s3, s36, 11
    v_add_u32 v5, s3, v5
    v_lshlrev_b32 v5, 2, v5
    buffer_store_dword v7, v5, s[32:35], 0 offen
    {name}_end:
    s_endpgm''')
    return k

def k_conv():
    name = 'conv_kernel'
    k = Kern(name, 640*8, 256, 8192 + 4*(2048+2048), vgpr=40)
    k(f's_cmp_ge_u32 s2, {640*8}\ns_cbranch_scc1 {name}_end')
    k.ldptr(4, 'x'); k.ldptr(8, 'ws'); k.ldptr(12, 'Dskip'); k('s_waitcnt lgkmcnt(0)')
    k.srd(16, D*T*4, base=8, off=WS_K); k.srd(20, D*T*2, base=8, off=WS_U); k.srd(24, D*T*2, base=8, off=WS_H)
    k.srd(4, D*T*2); k.srd(12, D*2)
    k('''s_lshr_b32 s36, s2, 3
    s_and_b32 s37, s2, 7
    s_lshl_b32 s3, s36, 13
    v_lshlrev_b32 v1, 2, v0
    v_add_u32 v2, s3, v1
    s_movk_i32 s40, 1280
    v_mul_lo_u32 v3, v0, s40
    s_lshl_b32 s3, s36, 1
    v_add_u32 v3, s3, v3
    v_mov_b32 v9, 0''')
    for j in range(8):
        k(f's_mov_b32 s41, {j*1024}\nbuffer_load_dword v{10+j}, v2, s[16:19], s41 offen')
        k(f's_mov_b32 s41, {j*256*1280}\nbuffer_load_ushort v{20+j}, v3, s[20:23], s41 offen')
    k('s_waitcnt vmcnt(0)')
    for j in range(8):
        k(f'ds_write_b32 v1, v{10+j} offset:{j*1024}')
        k(f'v_lshlrev_b32 v{20+j}, 16, v{20+j}\nds_write_b32 v1, v{20+j} offset:{8192+8192+j*1024}\nds_write_b32 v1, v9 offset:{8192+j*1024}')
    k(f'''s_lshl_b32 s42, s37, 8
    v_add_u32 v4, s42, v0
    v_lshlrev_b32 v5, 2, v4
    v_add_u32 v5, {16384-12}, v5
    v_mov_b32 v6, 0
    v_mov_b32 v7, 0
    s_add_u32 s43, s42, 256
    s_mov_b32 s38, 0
    s_waitcnt lgkmcnt(0)
    s_barrier
    {name}_loop:
    ds_read_b128 v[10:13], v6
    ds_read2_b32 v[14:15], v5 offset0:3 offset1:2
    ds_read2_b32 v[16:17], v5 offset0:1 offset1:0
    v_add_u32 v6, 16, v6
    v_subrev_u32 v5, 16, v5
    s_waitcnt lgkmcnt(0)
    v_fma_f32 v7, v10, v14, v7
    v_fma_f32 v7, v11, v15, v7
    v_fma_f32 v7, v12, v16, v7
    v_fma_f32 v7, v13, v17, v7
    s_add_u32 s38, s38, 4
    s_cmp_lt_u32 s38, s43
    s_cbranch_scc1 {name}_loop
    v_lshlrev_b32 v5, 2, v4
    ds_read_b32 v8, v5 offset:16384
    v_mul_lo_u32 v3, v4, s40
    s_lshl_b32 s3, s36, 1
    v_add_u32 v3, s3, v3
    v_mov_b32 v9, s3
    buffer_load_ushort v10, v3, s[4:7], 0 offen
    buffer_load_ushort v11, v9, s[12:15], 0 offen
    s_waitcnt vmcnt(0) lgkmcnt(0)
    v_lshlrev_b32 v10, 16, v10
    v_lshlrev_b32 v11, 16, v11
    v_mul_f32 v8, v8, v11''')
    rnd(k, 8); rnd(k, 7)
    k('v_add_f32 v7, v7, v8'); rnd(k, 7)
    k(f'''v_add_f32 v7, v7, v10
    v_cvt_pk_bf16_f32 v7, v7, v7
    buffer_store_short v7, v3, s[24:27], 0 offen
    {name}_end:
    s_endpgm''')
    return k

def ldB(k, dst, addr, srd, ldb, tmp):
    for j in range(8):
        k(f's_mov_b32 s41, {j*ldb}\nbuffer_load_ushort v{tmp+j}, v{addr}, s[{srd}:{srd+3}], s41 offen')
def pkB(k, dst, tmp):
    for j in range(4):
        k(f'v_lshl_or_b32 v{dst+j}, v{tmp+2*j+1}, 16, v{tmp+2*j}')

def k_gemm(name, mode):
    Kd, NC = (D, F) if mode == 1 else (F, D)
    ntn = NC // 32
    nw = 64 * ntn
    k = Kern(name, nw // 4, 256, 0, vgpr=100)
    k(f's_cmp_ge_u32 s2, {nw//4}\ns_cbranch_scc1 {name}_end')
    k.ldptr(8, 'ws'); k.ldptr(12, 'Wg' if mode == 1 else 'Wd'); k.ldptr(16, 'Wu'); k.ldptr(20, 'out'); k('s_waitcnt lgkmcnt(0)')
    k.srd(4, T*Kd*2, base=8, off=WS_U2 if mode == 1 else WS_ACT)
    k.srd(12, D*F*2); k.srd(16, D*F*2)
    if mode == 1: k.srd(20, T*F*2, base=8, off=WS_ACT)
    else: k.srd(20, T*D*2); k.srd(24, T*D*2, base=8, off=WS_H)
    k(f'''v_lshrrev_b32 v1, 6, v0
    s_nop 0
    v_readfirstlane_b32 s3, v1
    s_lshl_b32 s36, s2, 2
    s_add_u32 s36, s36, s3
    s_lshr_b32 s37, s36, 6
    s_and_b32 s36, s36, 63
    v_and_b32 v1, 31, v0
    v_bfe_u32 v2, v0, 5, 1
    s_lshl_b32 s3, s36, 5
    v_add_u32 v3, s3, v1
    s_mov_b32 s40, {Kd*2}
    v_mul_lo_u32 v3, v3, s40
    v_lshlrev_b32 v4, 4, v2
    v_add_u32 v3, v3, v4
    s_lshl_b32 s3, s37, 5
    v_add_u32 v5, s3, v1
    v_lshlrev_b32 v5, 1, v5
    s_mov_b32 s40, {NC*2*8}
    v_mul_lo_u32 v4, v2, s40
    v_add_u32 v6, v5, v4
    s_mov_b32 s38, 0''')
    for i in range(32): k(f'v_mov_b32 v{32+i}, 0')
    k(f'{name}_loop:\nbuffer_load_dwordx4 v[8:11], v3, s[4:7], 0 offen')
    ldB(k, 12, 6, 12, NC*2, 64)
    if mode == 1: ldB(k, 16, 6, 16, NC*2, 72)
    k('s_waitcnt vmcnt(0)'); pkB(k, 12, 64)
    if mode == 1: pkB(k, 16, 72)
    k('s_nop 1\nv_mfma_f32_32x32x16_bf16 v[32:47], v[8:11], v[12:15], v[32:47]')
    if mode == 1: k('v_mfma_f32_32x32x16_bf16 v[48:63], v[8:11], v[16:19], v[48:63]')
    k(f'''v_add_u32 v3, 32, v3
    v_add_u32 v6, {NC*2*16}, v6
    s_add_u32 s38, s38, 1
    s_cmp_lt_u32 s38, {Kd//16}
    s_cbranch_scc1 {name}_loop
    s_nop 7
    s_nop 7''')
    k(f'''s_lshl_b32 s3, s36, 5
    v_lshlrev_b32 v4, 2, v2
    v_add_u32 v4, s3, v4
    s_mov_b32 s40, {NC*2}
    v_mul_lo_u32 v4, v4, s40
    v_add_u32 v4, v4, v5''')
    for r in range(16):
        row = 8*(r//4) + r % 4
        k(f's_mov_b32 s41, {row*NC*2}')
        if mode == 1:
            g, u = 32+r, 48+r
            rnd(k, g); rnd(k, u)
            c = 2*math.log2(math.e)*math.sqrt(2/math.pi)
            k(f'''v_mul_f32 v8, v{g}, v{g}
            v_mul_f32 v8, {fl(-c*0.044715)}, v8
            v_add_f32 v8, {fl(-c)}, v8
            v_mul_f32 v8, v8, v{g}
            v_exp_f32 v8, v8
            s_nop 1
            v_add_f32 v8, 1.0, v8
            v_rcp_f32 v8, v8
            s_nop 1
            v_mul_f32 v8, v8, v{g}''')
            rnd(k, 8)
            k(f'v_mul_f32 v8, v8, v{u}\nv_cvt_pk_bf16_f32 v8, v8, v8\nbuffer_store_short v8, v4, s[20:23], s41 offen')
        else:
            rnd(k, 32+r)
            k(f'''buffer_load_ushort v8, v4, s[24:27], s41 offen
            s_waitcnt vmcnt(0)
            v_lshlrev_b32 v8, 16, v8
            v_add_f32 v8, v8, v{32+r}
            v_cvt_pk_bf16_f32 v8, v8, v8
            buffer_store_short v8, v4, s[20:23], s41 offen''')
    k(f'{name}_end:\ns_endpgm')
    return k

def k_empty(i, grid=256):
    k = Kern(f'e{i}_kernel', grid, 256, 0, vgpr=8); k('s_endpgm'); return k
ne = int(sys.argv[1]) if len(sys.argv) > 1 else 0
ks = [k_ln('ln1_kernel', 'x', 0, WS_U), k_kgen(), k_conv(), k_ln('ln2_kernel', 'ws', WS_H, WS_U2), k_gemm('g1_kernel', 1), k_gemm('g2_kernel', 2)]
es = [k_empty(i) for i in range(ne)]
open(f'naive{ne}.s', 'w').write(build(ks + es, ks[:3] + es + ks[3:]))
```

```python
import sys, math
from asmlib import *
T, D, F, N = 2048, 640, 1728, 128
WS_U, WS_K, WS_H, WS_U2, WS_ACT = 0, 4<<20, 12<<20, 16<<20, 20<<20

def wavesum(k, v, t1, t2):
    for m in (1, 2, 4, 8, 16, 32):
        k(f'v_xor_b32 v{t1}, {m*4}, v{t2}\nds_bpermute_b32 v{t1}, v{t1}, v{v}\ns_waitcnt lgkmcnt(0)\nv_add_f32 v{v}, v{v}, v{t1}')
OPT = set(sys.argv[2:])
def rnde(k, v):
    if 'nomimic' not in OPT: rnd(k, v)
def rnd(k, v):
    k(f'v_cvt_pk_bf16_f32 v{v}, v{v}, v{v}\nv_and_b32 v{v}, 0xffff0000, v{v}')

def k_ln(name, src_key, src_off, dst_off):
    k = Kern(name, 512, 256, 0, vgpr=40)
    k('s_cmp_ge_u32 s2, 512\ns_cbranch_scc1 ' + name + '_end')
    k.ldptr(4, src_key); k.ldptr(8, 'ws'); k('s_waitcnt lgkmcnt(0)')
    k.srd(4, T*D*2, off=src_off); k.srd(8, T*D*2, off=dst_off)
    k('''v_lshrrev_b32 v1, 6, v0
    v_and_b32 v2, 63, v0
    s_lshl_b32 s3, s2, 2
    v_add_u32 v1, s3, v1
    s_movk_i32 s12, 1280
    v_mul_lo_u32 v1, v1, s12
    v_lshlrev_b32 v2, 2, v2
    v_add_u32 v1, v1, v2''')
    for j in range(5): k(f'buffer_load_dword v{10+j}, v1, s[4:7], 0 offen offset:{j*256}')
    k('s_waitcnt vmcnt(0)')
    for j in range(5):
        k(f'v_lshlrev_b32 v{20+2*j}, 16, v{10+j}\nv_and_b32 v{21+2*j}, 0xffff0000, v{10+j}')
    k('v_mov_b32 v3, v20')
    for j in range(1, 10): k(f'v_add_f32 v3, v3, v{20+j}')
    wavesum(k, 3, 4, 2)
    k(f'v_mul_f32 v3, {fl(1/640)}, v3')
    k('v_mov_b32 v5, 0')
    for j in range(10): k(f'v_sub_f32 v6, v{20+j}, v3\nv_fma_f32 v5, v6, v6, v5')
    wavesum(k, 5, 4, 2)
    k(f'v_mul_f32 v5, {fl(1/640)}, v5'); rnd(k, 5)
    k(f'v_add_f32 v5, {fl(1e-5)}, v5'); rnd(k, 5)
    k('v_sqrt_f32 v5, v5\ns_nop 1'); rnd(k, 5)
    rnd(k, 3)
    k('v_rcp_f32 v7, v5\ns_nop 1')
    for j in range(10):
        k(f'v_sub_f32 v{20+j}, v{20+j}, v3'); rnde(k, 20+j)
        k(f'v_mul_f32 v{20+j}, v{20+j}, v7')
    for j in range(5):
        k(f'v_cvt_pk_bf16_f32 v{10+j}, v{20+2*j}, v{21+2*j}\nbuffer_store_dword v{10+j}, v1, s[8:11], 0 offen offset:{j*256}')
    k(name + '_end:\ns_endpgm')
    return k

def k_kgen():
    name = 'kgen_kernel'
    k = Kern(name, 640*8, 256, 2048, vgpr=40)
    k(f's_cmp_ge_u32 s2, {640*8}\ns_cbranch_scc1 {name}_end')
    names = ['Are', 'Aim', 'Bre', 'Bim', 'Cre', 'Cim']
    for i, n in enumerate(names): k.ldptr(4+4*i, n)
    k.ldptr(28, 'logdt'); k.ldptr(32, 'ws'); k('s_waitcnt lgkmcnt(0)')
    for i in range(6): k.srd(4+4*i, D*N*2)
    k.srd(28, D*2); k.srd(32, D*T*4, off=WS_K)
    k('''s_lshr_b32 s36, s2, 3
    s_and_b32 s37, s2, 7
    v_and_b32 v1, 127, v0
    s_lshl_b32 s3, s36, 7
    v_add_u32 v2, s3, v1
    v_lshlrev_b32 v2, 1, v2
    s_lshl_b32 s3, s36, 1
    v_mov_b32 v3, s3''')
    for i in range(6): k(f'buffer_load_ushort v{10+i}, v2, s[{4+4*i}:{7+4*i}], 0 offen')
    k('buffer_load_ushort v16, v3, s[28:31], 0 offen\ns_waitcnt vmcnt(0)')
    for i in range(7): k(f'v_lshlrev_b32 v{10+i}, 16, v{10+i}')
    k(f'v_mul_f32 v16, {fl(math.log2(math.e))}, v16\nv_exp_f32 v16, v16\ns_nop 1'); rnd(k, 16)
    k(f'''v_mul_f32 v12, v12, v16
    v_mul_f32 v13, v13, v16
    v_mul_f32 v20, v10, v16
    v_mul_f32 v20, {fl(math.log2(math.e))}, v20
    v_mul_f32 v21, v11, v16
    v_mul_f32 v21, {fl(1/(2*math.pi))}, v21
    v_mul_f32 v22, v14, v12
    v_mul_f32 v4, v15, v13
    v_sub_f32 v22, v22, v4
    v_mul_f32 v23, v14, v13
    v_fma_f32 v23, v15, v12, v23
    v_lshlrev_b32 v4, 4, v1
    ds_write_b128 v4, v[20:23]
    s_lshl_b32 s3, s37, 8
    v_add_u32 v5, s3, v0
    v_cvt_f32_u32 v6, v5''')
    rnd(k, 6)
    k(f'''v_mov_b32 v7, 0
    v_mov_b32 v8, 0
    s_mov_b32 s38, 0
    s_waitcnt lgkmcnt(0)
    s_barrier
    {name}_loop:
    ds_read_b128 v[20:23], v8
    v_add_u32 v8, 16, v8
    s_waitcnt lgkmcnt(0)
    v_mul_f32 v24, v20, v6
    v_exp_f32 v24, v24
    v_mul_f32 v25, v21, v6
    v_fract_f32 v25, v25
    v_cos_f32 v26, v25
    v_sin_f32 v27, v25
    s_nop 1
    v_mul_f32 v26, v26, v22
    v_fma_f32 v26, -v27, v23, v26
    v_fma_f32 v7, v24, v26, v7
    s_add_u32 s38, s38, 1
    s_cmp_lt_u32 s38, 128
    s_cbranch_scc1 {name}_loop
    s_lshl_b32 s3, s36, 11
    v_add_u32 v5, s3, v5
    v_lshlrev_b32 v5, 2, v5
    buffer_store_dword v7, v5, s[32:35], 0 offen
    {name}_end:
    s_endpgm''')
    return k

def k_conv():
    name = 'conv_kernel'
    k = Kern(name, 640*8, 256, 8192 + 4*(2048+2048), vgpr=40)
    k(f's_cmp_ge_u32 s2, {640*8}\ns_cbranch_scc1 {name}_end')
    k.ldptr(4, 'x'); k.ldptr(8, 'ws'); k.ldptr(12, 'Dskip'); k('s_waitcnt lgkmcnt(0)')
    k.srd(16, D*T*4, base=8, off=WS_K); k.srd(20, D*T*2, base=8, off=WS_U); k.srd(24, D*T*2, base=8, off=WS_H)
    k.srd(4, D*T*2); k.srd(12, D*2)
    k('''s_lshr_b32 s36, s2, 3
    s_and_b32 s37, s2, 7
    s_lshl_b32 s3, s36, 13
    v_lshlrev_b32 v1, 2, v0
    v_add_u32 v2, s3, v1
    s_movk_i32 s40, 1280
    v_mul_lo_u32 v3, v0, s40
    s_lshl_b32 s3, s36, 1
    v_add_u32 v3, s3, v3
    v_mov_b32 v9, 0''')
    for j in range(8):
        k(f's_mov_b32 s41, {j*1024}\nbuffer_load_dword v{10+j}, v2, s[16:19], s41 offen')
        k(f's_mov_b32 s41, {j*256*1280}\nbuffer_load_ushort v{20+j}, v3, s[20:23], s41 offen')
    k('s_waitcnt vmcnt(0)')
    for j in range(8):
        k(f'ds_write_b32 v1, v{10+j} offset:{j*1024}')
        k(f'v_lshlrev_b32 v{20+j}, 16, v{20+j}\nds_write_b32 v1, v{20+j} offset:{8192+8192+j*1024}\nds_write_b32 v1, v9 offset:{8192+j*1024}')
    k(f'''s_lshl_b32 s42, s37, 8
    v_add_u32 v4, s42, v0
    v_lshlrev_b32 v5, 2, v4
    v_add_u32 v5, {16384-12}, v5
    v_mov_b32 v6, 0
    v_mov_b32 v7, 0
    s_add_u32 s43, s42, 256
    s_mov_b32 s38, 0
    s_waitcnt lgkmcnt(0)
    s_barrier
    {name}_loop:
    ds_read_b128 v[10:13], v6
    ds_read2_b32 v[14:15], v5 offset0:3 offset1:2
    ds_read2_b32 v[16:17], v5 offset0:1 offset1:0
    v_add_u32 v6, 16, v6
    v_subrev_u32 v5, 16, v5
    s_waitcnt lgkmcnt(0)
    v_fma_f32 v7, v10, v14, v7
    v_fma_f32 v7, v11, v15, v7
    v_fma_f32 v7, v12, v16, v7
    v_fma_f32 v7, v13, v17, v7
    s_add_u32 s38, s38, 4
    s_cmp_lt_u32 s38, s43
    s_cbranch_scc1 {name}_loop
    v_lshlrev_b32 v5, 2, v4
    ds_read_b32 v8, v5 offset:16384
    v_mul_lo_u32 v3, v4, s40
    s_lshl_b32 s3, s36, 1
    v_add_u32 v3, s3, v3
    v_mov_b32 v9, s3
    buffer_load_ushort v10, v3, s[4:7], 0 offen
    buffer_load_ushort v11, v9, s[12:15], 0 offen
    s_waitcnt vmcnt(0) lgkmcnt(0)
    v_lshlrev_b32 v10, 16, v10
    v_lshlrev_b32 v11, 16, v11
    v_mul_f32 v8, v8, v11''')
    rnde(k, 8); rnde(k, 7)
    k('v_add_f32 v7, v7, v8'); rnde(k, 7)
    k(f'''v_add_f32 v7, v7, v10
    v_cvt_pk_bf16_f32 v7, v7, v7
    buffer_store_short v7, v3, s[24:27], 0 offen
    {name}_end:
    s_endpgm''')
    return k

def ldB(k, dst, addr, srd, ldb, tmp):
    for j in range(8):
        k(f's_mov_b32 s41, {j*ldb}\nbuffer_load_ushort v{tmp+j}, v{addr}, s[{srd}:{srd+3}], s41 offen')
def pkB(k, dst, tmp):
    for j in range(4):
        k(f'v_lshl_or_b32 v{dst+j}, v{tmp+2*j+1}, 16, v{tmp+2*j}')

def k_gemm(name, mode):
    Kd, NC = (D, F) if mode == 1 else (F, D)
    ntn = NC // 32
    nw = 64 * ntn
    k = Kern(name, nw // 4, 256, 0, vgpr=100)
    k(f's_cmp_ge_u32 s2, {nw//4}\ns_cbranch_scc1 {name}_end')
    k.ldptr(8, 'ws'); k.ldptr(12, 'Wg' if mode == 1 else 'Wd'); k.ldptr(16, 'Wu'); k.ldptr(20, 'out'); k('s_waitcnt lgkmcnt(0)')
    k.srd(4, T*Kd*2, base=8, off=WS_U2 if mode == 1 else WS_ACT)
    k.srd(12, D*F*2); k.srd(16, D*F*2)
    if mode == 1: k.srd(20, T*F*2, base=8, off=WS_ACT)
    else: k.srd(20, T*D*2); k.srd(24, T*D*2, base=8, off=WS_H)
    k(f'''v_lshrrev_b32 v1, 6, v0
    s_nop 0
    v_readfirstlane_b32 s3, v1
    s_lshl_b32 s36, s2, 2
    s_add_u32 s36, s36, s3
    s_lshr_b32 s37, s36, 6
    s_and_b32 s36, s36, 63
    v_and_b32 v1, 31, v0
    v_bfe_u32 v2, v0, 5, 1
    s_lshl_b32 s3, s36, 5
    v_add_u32 v3, s3, v1
    s_mov_b32 s40, {Kd*2}
    v_mul_lo_u32 v3, v3, s40
    v_lshlrev_b32 v4, 4, v2
    v_add_u32 v3, v3, v4
    s_lshl_b32 s3, s37, 5
    v_add_u32 v5, s3, v1
    v_lshlrev_b32 v5, 1, v5
    s_mov_b32 s40, {NC*2*8}
    v_mul_lo_u32 v4, v2, s40
    v_add_u32 v6, v5, v4
    s_mov_b32 s38, 0''')
    for i in range(32): k(f'v_mov_b32 v{32+i}, 0')
    k(f'{name}_loop:\nbuffer_load_dwordx4 v[8:11], v3, s[4:7], 0 offen')
    ldB(k, 12, 6, 12, NC*2, 64)
    if mode == 1: ldB(k, 16, 6, 16, NC*2, 72)
    k('s_waitcnt vmcnt(0)'); pkB(k, 12, 64)
    if mode == 1: pkB(k, 16, 72)
    k('s_nop 1\nv_mfma_f32_32x32x16_bf16 v[32:47], v[8:11], v[12:15], v[32:47]')
    if mode == 1: k('v_mfma_f32_32x32x16_bf16 v[48:63], v[8:11], v[16:19], v[48:63]')
    k(f'''v_add_u32 v3, 32, v3
    v_add_u32 v6, {NC*2*16}, v6
    s_add_u32 s38, s38, 1
    s_cmp_lt_u32 s38, {Kd//16}
    s_cbranch_scc1 {name}_loop
    s_nop 7
    s_nop 7''')
    k(f'''s_lshl_b32 s3, s36, 5
    v_lshlrev_b32 v4, 2, v2
    v_add_u32 v4, s3, v4
    s_mov_b32 s40, {NC*2}
    v_mul_lo_u32 v4, v4, s40
    v_add_u32 v4, v4, v5''')
    for r in range(16):
        row = 8*(r//4) + r % 4
        k(f's_mov_b32 s41, {row*NC*2}')
        if mode == 1:
            g, u = 32+r, 48+r
            rnde(k, g); rnde(k, u)
            c = 2*math.log2(math.e)*math.sqrt(2/math.pi)
            k(f'''v_mul_f32 v8, v{g}, v{g}
            v_mul_f32 v8, {fl(-c*0.044715)}, v8
            v_add_f32 v8, {fl(-c)}, v8
            v_mul_f32 v8, v8, v{g}
            v_exp_f32 v8, v8
            s_nop 1
            v_add_f32 v8, 1.0, v8
            v_rcp_f32 v8, v8
            s_nop 1
            v_mul_f32 v8, v8, v{g}''')
            rnde(k, 8)
            k(f'v_mul_f32 v8, v8, v{u}\nv_cvt_pk_bf16_f32 v8, v8, v8\nbuffer_store_short v8, v4, s[20:23], s41 offen')
        else:
            rnde(k, 32+r)
            for o in OPT:
                if o.startswith('add'): k(f'v_add_f32 v{32+r}, {fl(float(o[3:]))}, v{32+r}')
                if o.startswith('row') and r == 0: k(f's_cmp_eq_u32 s36, 5\ns_cselect_b32 s42, {fl(float(o[3:]))}, 0\nv_add_f32 v{32+r}, s42, v{32+r}')
            k(f'''buffer_load_ushort v8, v4, s[24:27], s41 offen
            s_waitcnt vmcnt(0)
            v_lshlrev_b32 v8, 16, v8
            v_add_f32 v8, v8, v{32+r}
            v_cvt_pk_bf16_f32 v8, v8, v8
            buffer_store_short v8, v4, s[20:23], s41 offen''')
    k(f'{name}_end:\ns_endpgm')
    return k

def k_empty(i, grid=256):
    k = Kern(f'e{i}_kernel', grid, 256, 0, vgpr=8); k('s_endpgm'); return k
ne = int(sys.argv[1]) if len(sys.argv) > 1 else 0
ks = [k_ln('ln1_kernel', 'x', 0, WS_U), k_kgen(), k_conv(), k_ln('ln2_kernel', 'ws', WS_H, WS_U2), k_gemm('g1_kernel', 1), k_gemm('g2_kernel', 2)]
es = [k_empty(i) for i in range(ne)]
open(f'naive{ne}{"_".join([""]+sorted(OPT))}.s', 'w').write(build(ks + es, ks[:3] + es + ks[3:]))
```

```python
import re, copy
REG = re.compile(r'^(-|\|)?([vas])(\d+)\|?$')
RNG = re.compile(r'^(-|\|)?([vas])\[(\d+):(\d+)\]\|?$')
TRANS = ('v_exp_f32', 'v_log_f32', 'v_rcp_f32', 'v_rsq_f32', 'v_sqrt_f32', 'v_sin_f32', 'v_cos_f32')
def regs(tok):
    tok = tok.strip()
    if tok.startswith('neg(') or tok.startswith('abs('): tok = tok[4:-1]
    m = REG.match(tok)
    if m: return {(m.group(2), int(m.group(3)))}
    m = RNG.match(tok)
    if m: return {(m.group(2), i) for i in range(int(m.group(3)), int(m.group(4)) + 1)}
    if tok == 'vcc': return {('s', 106), ('s', 107)}
    if tok == 'vcc_lo': return {('s', 106)}
    if tok == 'vcc_hi': return {('s', 107)}
    if tok == 'exec': return {('s', 126), ('s', 127)}
    if tok == 'exec_lo': return {('s', 126)}
    if tok == 'exec_hi': return {('s', 127)}
    if tok == 'm0': return {('s', 124)}
    return set()
VCC = {('s', 106), ('s', 107)}; EXEC = {('s', 126), ('s', 127)}; M0 = {('s', 124)}
class Ins:
    def __init__(self, text):
        self.text = text
        t = text.split(';')[0].strip()
        p = t.split(None, 1)
        self.op = op = p[0]
        rest = p[1] if len(p) > 1 else ''
        ops, cur, d = [], '', 0
        for ch in rest:
            if ch == '[': d += 1
            if ch == ']': d -= 1
            if ch == ',' and d == 0: ops.append(cur.strip()); cur = ''
            else: cur += ch
        if cur.strip(): ops.append(cur.strip())
        mods = ''
        if ops:
            last = ops[-1].split(None, 1)
            ops[-1] = last[0]
            mods = last[1] if len(last) > 1 else ''
        self.ops, self.mods = ops, mods
        R = [regs(o) for o in ops]
        U = lambda l: set().union(*l) if l else set()
        self.dst, self.src = set(), set()
        self.kind = 'other'; self.passes = 0; self.srcC = set(); self.srcAB = set(); self.data = set()
        self.vm = self.lg = False; self.smem = False
        if op.startswith('v_mfma'):
            self.kind = 'mfma'; self.dst = R[0]; self.srcAB = R[1] | R[2]; self.srcC = R[3]; self.src = self.srcAB | self.srcC
            self.passes = 8 if '32x32x16' in op else 4 if '16x16x32' in op else 2 if '4x4x4' in op else None
            assert self.passes, op
        elif op.startswith('v_'):
            self.kind = 'valu'
            if op.startswith('v_permlane') and 'swap' in op: self.dst = R[0] | R[1]; self.src = R[0] | R[1]
            elif op.startswith('v_cmpx'): self.dst = set(EXEC); self.src = U(R)
            elif op.startswith('v_cmp'): self.dst = R[0]; self.src = U(R[1:])
            elif '_co_' in op: self.dst = R[0] | R[1]; self.src = U(R[2:])
            else:
                self.dst = R[0]; self.src = U(R[1:])
                if op.startswith(('v_fmac', 'v_dot2c', 'v_mac', 'v_writelane')) or 'dpp' in op or 'row_' in mods or 'quad_perm' in mods or 'dst_sel' in mods: self.src |= R[0]
                if op.startswith('v_cndmask') and len(ops) == 3: self.src |= VCC
            self.trans = op.replace('_e32', '').replace('_e64', '') in TRANS
            self.dpp = 'dpp' in op or 'row_' in mods or 'quad_perm' in mods or 'wave_' in mods
            self.dot = op.startswith('v_dot')
            self.opsel = 'dst_sel' in mods
        elif op.startswith('ds_'):
            self.kind = 'ds'; self.lg = True
            if op.startswith(('ds_read', 'ds_bpermute', 'ds_permute', 'ds_swizzle')) or '_rtn' in op: self.dst = R[0]; self.src = U(R[1:])
            else: self.src = U(R)
        elif op.startswith(('buffer_', 'global_')):
            self.kind = 'vmem'; self.vm = True
            if op.startswith('buffer_inv') or op.startswith('buffer_wbl2'): pass
            elif '_load' in op:
                if re.search(r'\blds\b', mods) or 'load_lds' in op: self.src = U(R) | M0; self.kind = 'dma'
                else: self.dst = R[0]; self.src = U(R[1:])
            else:
                self.src = U(R)
                if 'x4' in op or 'x3' in op: self.data = R[0] if op.startswith('buffer') else R[1]
        elif op.startswith(('s_load', 's_buffer_load', 's_memtime', 's_memrealtime')):
            self.kind = 'smem'; self.lg = True; self.smem = True; self.dst = R[0]; self.src = U(R[1:])
        elif op == 's_nop': self.kind = 'nop'; self.n = int(ops[0], 0) + 1
        elif op == 's_waitcnt': self.kind = 'wait'
        elif op.startswith('s_'):
            self.kind = 'salu'
            if op.startswith(('s_cmp', 's_cbranch', 's_branch', 's_barrier', 's_endpgm', 's_sleep', 's_setprio', 's_bitcmp', 's_setpc')): self.src = U(R)
            else:
                self.dst = R[0]; self.src = U(R[1:])
                if 'saveexec' in op: self.dst |= EXEC; self.src |= EXEC
                if op.startswith(('s_cmov', 's_addk', 's_mulk')): self.src |= R[0]
        else: raise ValueError(text)
def is_v(r): return r[0] in 'va'
XD = {2: 5, 4: 8, 8: 12}; XC = {2: 4, 4: 6, 8: 10}; XW = {2: 1, 4: 3, 8: 7}
def hazard(p, c):
    n = 0
    vw = {r for r in p.dst if is_v(r)}; sw = {r for r in p.dst if r[0] == 's'}
    if p.kind == 'valu':
        if c.kind == 'mfma' and vw & c.src: n = max(n, 3 if p.dot else 2)
        if c.kind == 'mfma' and sw & EXEC: n = max(n, 4)
        if c.kind == 'valu':
            if c.dpp and vw & c.src: n = max(n, 2)
            if c.dpp and sw & EXEC: n = max(n, 5)
            if c.op.startswith('v_permlane') and vw & c.src: n = max(n, 2)
            if c.op.startswith('v_permlane') and sw & EXEC: n = max(n, 4)
            if c.op.startswith(('v_readlane', 'v_readfirstlane')) and vw & c.src: n = max(n, 1)
            if c.op.startswith(('v_readlane', 'v_readfirstlane', 'v_writelane')) and sw & EXEC: n = max(n, 4)
            if c.op.startswith(('v_readlane', 'v_writelane')) and sw & c.src: n = max(n, 4)
            if sw & c.src: n = max(n, 2)
            if p.trans and not c.trans and vw & c.src: n = max(n, 1)
            if p.opsel and vw & (c.src | c.dst): n = max(n, 1)
            if p.dot and vw & (c.src | c.dst):
                if not (c.op == p.op and not (vw & (regs(c.ops[1]) | regs(c.ops[2])))): n = max(n, 3)
        if c.kind in ('vmem', 'dma') and sw & c.src: n = max(n, 5)
        if p.dot and c.kind in ('vmem', 'ds') and vw & c.src: n = max(n, 3)
        if p.trans and c.kind in ('vmem', 'ds') and vw & c.src: n = max(n, 1)
    if p.kind == 'salu' and sw & M0 and c.kind == 'dma': n = max(n, 1)
    if p.kind == 'vmem' and p.data and p.data & c.dst: n = max(n, 2)
    if p.kind == 'mfma':
        P = p.passes
        if c.kind == 'mfma':
            if p.dst & c.srcAB: n = max(n, XD[P])
            if p.dst & c.srcC:
                if p.dst == c.srcC and c.passes == P: n = max(n, 2 if P == 2 else 0)
                else: n = max(n, XC[P])
            elif p.dst & c.dst: n = max(n, XC[P])
        elif c.kind in ('valu', 'vmem', 'ds', 'dma'):
            if p.dst & (c.src | c.dst): n = max(n, XD[P])
            if c.kind == 'valu' and p.srcC & c.dst: n = max(n, XW[P])
    return n
def run(lines, lazy_lg=0, lazy_vm=0, stats=None):
    out = []; hist = []
    pos = 0
    q = {'vm': [], 'lg': []}
    tag = None; maybe = 0; nins = 0; stack = []
    st = dict(nop=0, wait=0)
    def later(cls, i): return sum(1 for o in q[cls][i + 1:] if not o['maybe'])
    def emit(text):
        nonlocal pos, nins
        I = Ins(text)
        need = 0
        for (p, pp) in hist:
            h = hazard(p, I)
            if h: need = max(need, h - (pos - pp - 1))
        if need > 0:
            out.append(f'  s_nop {need - 1}'); pos += need; st['nop'] += 1
        out.append('  ' + text.strip())
        hist.append((I, pos)); pos += I.n if I.kind == 'nop' else 1
        while hist and pos - hist[0][1] > 24: hist.pop(0)
        nins += 1
        return I
    def do_wait(vm=None, lg=None):
        s = []
        if vm is not None:
            assert vm <= 63; s.append(f'vmcnt({vm})')
        if lg is not None:
            assert lg <= 15; s.append(f'lgkmcnt({lg})')
        emit('s_waitcnt ' + ' '.join(s)); st['wait'] += 1
        apply_wait(vm, lg)
    def apply_wait(vm, lg):
        for cls, n in (('vm', vm), ('lg', lg)):
            if n is None: continue
            if n == 0: q[cls].clear(); continue
            if cls == 'lg' and any(o['smem'] for o in q[cls]): continue
            keep = [o for i, o in enumerate(q[cls]) if later(cls, i) < n]
            q[cls][:] = keep
    def need_wait(cls, idx, lazy):
        if lazy:
            while idx + 1 < len(q[cls]) and nins - q[cls][idx + 1]['idx'] >= lazy: idx += 1
        if cls == 'lg' and any(o['smem'] for o in q[cls]): return 0
        return min(later(cls, idx), 63 if cls == 'vm' else 15)
    for l in lines:
        s = l.strip()
        if not s: continue
        if s.startswith(';@'):
            d = s[2:].split()
            if d[0] == 'tag': tag = d[1]
            elif d[0] in ('waitvm', 'waitlg'):
                cls = d[0][4:]
                ids = [i for i, o in enumerate(q[cls]) if o['tag'] == d[1]]
                if ids:
                    n = need_wait(cls, ids[-1], 0)
                    do_wait(**{cls: n})
            elif d[0] == 'maybe_begin': maybe += 1
            elif d[0] == 'maybe_end': maybe -= 1
            elif d[0] == 'forget': q['vm'].clear(); q['lg'].clear()
            elif d[0] == 'push': stack.append((copy.deepcopy(q), list(hist), pos))
            elif d[0] == 'pop':
                qq, hh, pp = stack.pop(); q['vm'][:] = qq['vm']; q['lg'][:] = qq['lg']; hist[:] = hh; pos = pp
            elif d[0] == 'cut': out.append(';@cut')
            elif d[0] == 'lazy': lazy_lg, lazy_vm = int(d[1]), int(d[2])
            else: raise ValueError(s)
            continue
        if s.startswith(';') or s.startswith('.'): out.append(l); continue
        if s.endswith(':'):
            out.append(s); continue
        I = Ins(s)
        if I.kind == 'wait':
            vm = re.search(r'vmcnt\((\d+)\)', s); lg = re.search(r'lgkmcnt\((\d+)\)', s)
            emit(s); apply_wait(int(vm.group(1)) if vm else None, int(lg.group(1)) if lg else None); continue
        touch = I.src | I.dst
        w = {}
        for cls, lazy in (('vm', lazy_vm), ('lg', lazy_lg)):
            ids = [i for i, o in enumerate(q[cls]) if o['dst'] & touch]
            if ids and ((cls == 'vm' and I.vm) or (cls == 'lg' and I.lg and not I.smem and not any(o['smem'] for o in q[cls]))):
                ids = [i for i in ids if q[cls][i]['dst'] & I.src]
            if ids: w[cls] = need_wait(cls, ids[-1], lazy)
        if w: do_wait(**w)
        I = emit(s)
        for cls, f in (('vm', I.vm), ('lg', I.lg)):
            if f:
                q[cls].append(dict(dst=set(I.dst), tag=tag, maybe=maybe > 0, smem=I.smem, idx=nins))
        if I.vm or I.lg: tag = None
        if len(q['vm']) > 200: q['vm'].pop(0)
    if stats is not None: stats.update(st)
    return out
```

```python
import math
from asmlib import *
T, D, F, N = 2048, 640, 1728, 128
WS_EPOCH = 0x0
WS_STATS = 0x1000
WS_FLAGH = 0x6000
WS_FLAGW = 0x7000
WS_FLAGA = 0x8000
WS_ST2   = 0xA000
WS_HP    = 0x100000
WS_ACT   = 0x400000
WS_WDP   = 0xB00000
WS_WP    = 0xE00000
WS_DBG   = 0x2000000
WS_PROF  = 0xF000000
WS_SIZE  = 0x10000000
S_X, S_ARE, S_AIM, S_BRE, S_BIM, S_CRE, S_CIM, S_LDT = 4, 6, 8, 10, 12, 14, 16, 18
S_DSK, S_BX, S_WG, S_WU, S_WD, S_OUT, S_DBG, S_WS = 20, 22, 24, 26, 28, 30, 32, 34
R_WS, R_X, R_A, R_B, R_OUT = 36, 40, 44, 48, 52
S_TAG, S_WAVE, S_XCD, S_I = 56, 57, 58, 59
S_CG = 60
S_PROF = 80
LOG2E = math.log2(math.e)
LDS_TOTAL = 163840
class Cfg:
    prof = False
    warm = 1
    cyc = False
    kx = ''
    noslice = False
    slicelate = False
    stop = None
cfg = Cfg()
def srd(r): return f's[{r}:{r+3}]'
def stamp(k, i):
    if not cfg.prof: return
    k(f'{"s_memtime" if cfg.cyc else "s_memrealtime"} s[96:97]\ns_waitcnt lgkmcnt(0)\ns_mov_b32 s{S_PROF+i}, s96')
def prof_init(k):
    if not cfg.prof: return
    for i in range(16): k(f's_mov_b32 s{S_PROF+i}, 0')
def prof_store(k):
    if not cfg.prof: return
    L = k.lab('pf')
    k(f's_cmp_lg_u32 s{S_WAVE}, 0\ns_cbranch_scc1 {L}')
    k('s_mov_b64 exec, -1\nv_mov_b32 v1, 0')
    for i in range(16): k(f'v_writelane_b32 v1, s{S_PROF+i}, {i}')
    k(f'''v_and_b32 v2, 63, v0
    v_lshlrev_b32 v2, 2, v2
    s_lshl_b32 s96, s2, 6
    s_add_u32 s96, s96, {hex(WS_PROF)}
    v_cmp_gt_u32 vcc, 64, v2
    s_and_saveexec_b64 s[98:99], vcc
    buffer_store_dword v1, v2, {srd(R_WS)}, s96 offen
    s_waitcnt vmcnt(0)
    {L}:''')
def pk(op, d, a, b, c=None, mods=''):
    r = lambda x: x if isinstance(x, str) else f'v[{x}:{x+1}]'
    s = f'v_pk_{op}_f32 {r(d)}, {r(a)}, {r(b)}'
    if c is not None: s += f', {r(c)}'
    return s + (' ' + mods if mods else '')
def cmul(k, z, x, e, t):
    k(pk('mul', t, x + 2, e + 2))
    k(pk('mul', t + 2, x, e + 2))
    k(pk('fma', z, x, e, t, 'neg_lo:[0,0,1] neg_hi:[0,0,1]'))
    k(pk('fma', z + 2, x + 2, e, t + 2))
```

```python
from common import *
from p_pro import ln1
TBL = 33792
CB0, CBS = 112128, 12928
KC0, KC1 = 4608, 4608 + 4160
VX = 208
VG = 224
VPRE = 160
ROWS = {0: [0, 1, 2, 3, 4, 5, 6, 7, 512, 516, 520, 1024, 1032, 1280, 1288, 8],
        1: [256, 256, 258, 260, 260, 260, 262, 264, 768, 772, 776, 1536, 1544, 1792, 1800, 264]}
def rows_of(off):
    return [8 * (r >> 2) + 4 * h + (r & 3) for h in (0, 1) for r in range(16) if ROWS[h][r] == off]
def zipl(*ls):
    out = []
    n = max(len(l) for l in ls)
    for i in range(n):
        for l in ls:
            a, b = i * len(l) // n, (i + 1) * len(l) // n
            out += l[a:b]
    return out
class Buf:
    def __init__(s): s.L = []
    def __call__(s, t): s.L += [x.strip() for x in t.strip().split('\n') if x.strip()]
def stats_loads(k):
    for j in range(4):
        k(f'buffer_load_dwordx4 v[{VG+4*j}:{VG+4*j+3}], v{VG+16}, {srd(R_WS)}, s{66+j} offen sc1')
def conv_loads(k):
    k(f'''s_mul_i32 s{S_CG}, s{S_XCD}, 20
    s_add_u32 s{S_CG}, s{S_CG}, s{S_I}
    s_lshl_b32 s64, s{S_CG}, 3
    s_load_dwordx2 s[70:71], s[{S_LDT}:{S_LDT+1}], s64
    s_load_dwordx2 s[72:73], s[{S_DSK}:{S_DSK+1}], s64
    s_lshl_b32 s65, s{S_CG}, 10
    v_lshl_add_u32 v20, v0, 2, s65''')
    for i, p in enumerate((S_ARE, S_AIM, S_BRE, S_BIM, S_CRE, S_CIM)):
        k(f'global_load_dword v{24+i}, v20, s[{p}:{p+1}]')
    k(f'''s_movk_i32 s65, 2560
    v_mul_lo_u32 v21, v0, s65
    v_add_u32 v21, s64, v21''')
    if not cfg.slicelate: slice_loads(k)
    for j in range(4): k(f's_mov_b32 s{66+j}, {hex(WS_STATS + j*4096)}')
    k(f'v_lshlrev_b32 v{VG+16}, 4, v0')
def slice_loads(k):
    if cfg.noslice: return
    for j in range(4):
        if j: k(f's_mov_b32 s65, {j*512*1280}')
        so = 's65' if j else '0'
        for e in range(2):
            k(f'buffer_load_dwordx2 v[{VX+4*j+2*e}:{VX+4*j+2*e+1}], v21, {srd(R_X)}, {so} offen offset:{e*1280}')
def kgen(k):
    AR, AI, B, C = 32, 34, 36, 40
    E1, E8, E256, E2, E4, CC = 44, 48, 52, 56, 60, 64
    k(f'''s_waitcnt lgkmcnt(0)
    s_lshl_b32 s64, s{S_WAVE}, 4
    s_lshr_b64 s[70:71], s[70:71], s64
    s_lshl_b32 s70, s70, 16
    v_mov_b32 v30, {fl(LOG2E)}
    v_mul_f32 v30, s70, v30
    v_exp_f32 v30, v30
    s_mul_i32 s64, s{S_WAVE}, {TBL}
    v_lshl_add_u32 v22, v1, 3, s64
    v_cvt_pk_bf16_f32 v30, v30, v30
    v_and_b32 v30, 0xffff0000, v30''')
    for i, d in enumerate((AR, AI, B, B + 2, C, C + 2)):
        k(f'v_lshlrev_b32 v{d}, 16, v{24+i}\nv_and_b32 v{d+1}, 0xffff0000, v{24+i}')
    k('v_mov_b32 v31, v30')
    for d in (AR, AI, B, B + 2): k(pk('mul', d, d, 30))
    for d, c in ((AR, LOG2E), (AI, 1 / (2 * math.pi))):
        k(f'v_mul_f32 v{d}, {fl(c)}, v{d}\nv_mul_f32 v{d+1}, {fl(c)}, v{d+1}')
    cmul(k, CC, C, B, 68)
    for E, s in ((E8, 8.0), (E1, 1.0), (E256, 256.0)):
        a = Buf(); b = Buf()
        for m, q in ((0, a), (1, b)):
            t = 72 + 4 * m
            if s == 1.0:
                q(f'v_exp_f32 v{t}, v{AR+m}\nv_fract_f32 v{t+1}, v{AI+m}')
            else:
                q(f'v_mul_f32 v{t}, {fl(s)}, v{AR+m}\nv_mul_f32 v{t+1}, {fl(s)}, v{AI+m}\nv_exp_f32 v{t}, v{t}\nv_fract_f32 v{t+1}, v{t+1}')
            q(f'v_cos_f32 v{t+2}, v{t+1}\nv_sin_f32 v{t+3}, v{t+1}\nv_mul_f32 v{E+m}, v{t}, v{t+2}\nv_mul_f32 v{E+2+m}, v{t}, v{t+3}')
        for l in zipl(a.L, b.L): k(l)
    stamp(k, 6)
    wr = [0]
    def put(q, z, rows, base):
        t = 96 + 2 * (wr[0] % 8); wr[0] += 1
        q(f'v_cvt_pk_bf16_f32 v{t}, v{z}, v{z+1}\nv_cvt_pk_bf16_f32 v{t+1}, v{z+2}, v{z+3}')
        for r in rows: q(f'ds_write_b64 v22, v[{t}:{t+1}] offset:{base + r*528}')
    cq = Buf(); Z = 80
    cq('v_mov_b32 v112, 0x3f803f80\nv_mov_b32 v113, 0\nds_write_b64 v22, v[112:113] offset:16896')
    cq(f'v_mov_b32 v{Z}, v{E8}\nv_mov_b32 v{Z+1}, v{E8+1}\nv_sub_f32 v{Z+2}, 0, v{E8+2}\nv_sub_f32 v{Z+3}, 0, v{E8+3}')
    wr[0] = 0
    def putc(j):
        t = 96 + 2 * (j % 4)
        cq(f'v_cvt_pk_bf16_f32 v{t}, v{Z}, v{Z+1}\nv_cvt_pk_bf16_f32 v{t+1}, v{Z+2}, v{Z+3}\nds_write_b64 v22, v[{t}:{t+1}] offset:{16896 + j*528}')
    putc(1)
    for j in range(2, 32):
        t = 84
        cq(pk('mul', t, Z + 2, E8 + 2)); cq(pk('mul', t + 2, Z, E8 + 2))
        cq(pk('fma', Z, Z, E8, t)); cq(pk('fma', Z + 2, Z + 2, E8, t + 2, 'neg_lo:[0,0,1] neg_hi:[0,0,1]'))
        putc(j)
    rq = Buf(); Y, P = 88, 92; tt = 68
    cnt = [0]
    def putr(z, off):
        t = 104 + 2 * (cnt[0] % 4); cnt[0] += 1
        rq(f'v_cvt_pk_bf16_f32 v{t}, v{z}, v{z+1}\nv_cvt_pk_bf16_f32 v{t+1}, v{z+2}, v{z+3}')
        for r in rows_of(off): rq(f'ds_write_b64 v22, v[{t}:{t+1}] offset:{r*528}')
    putr(CC, 0)
    cmul(rq, Y, CC, E1, tt); putr(Y, 1)
    for o in range(2, 9): cmul(rq, Y, Y, E1, tt); putr(Y, o)
    cmul(rq, E2, E1, E1, tt); cmul(rq, E4, E2, E2, tt)
    cmul(rq, P, CC, E256, tt); putr(P, 256)
    cmul(rq, Y, P, E2, tt); putr(Y, 258)
    for o in (260, 262, 264): cmul(rq, Y, Y, E2, tt); putr(Y, o)
    for base in (512, 768):
        cmul(rq, P, P, E256, tt); putr(P, base)
        cmul(rq, Y, P, E4, tt); putr(Y, base + 4)
        cmul(rq, Y, P, E8, tt); putr(Y, base + 8)
    for base in (1024, 1280, 1536, 1792):
        cmul(rq, P, P, E256, tt); putr(P, base)
        cmul(rq, Y, P, E8, tt); putr(Y, base + 8)
    for l in zipl(cq.L, rq.L):
        if 'w' in cfg.kx and l.startswith('ds_write'): continue
        if 'c' in cfg.kx and l.startswith('v_cvt'): continue
        if 'p' in cfg.kx and l.startswith('v_pk'): continue
        k(l)
    stamp(k, 7)
    stats_loads(k)
    k(f'''v_and_b32 v23, 31, v1
    s_movk_i32 s65, 528
    v_mul_lo_u32 v23, v23, s65
    v_lshrrev_b32 v24, 5, v1
    v_lshl_add_u32 v23, v24, 4, v23
    v_add_u32 v23, s64, v23''')
    ACC = 144
    def rd(ks):
        a = 32 + 8 * (ks % 12)
        k(f'ds_read_b128 v[{a}:{a+3}], v23 offset:{ks*32}\nds_read_b128 v[{a+4}:{a+7}], v23 offset:{16896 + ks*32}')
    for ks in range(6): rd(ks)
    for ks in range(16):
        a = 32 + 8 * (ks % 12)
        c = '0' if ks == 0 else f'v[{ACC}:{ACC+15}]'
        k(f'v_mfma_f32_32x32x16_bf16 v[{ACC}:{ACC+15}], v[{a}:{a+3}], v[{a+4}:{a+7}], {c}')
        if ks + 6 < 16: rd(ks + 6)
def kwrite(k):
    A = 144
    k(f'''s_mul_i32 s74, s{S_WAVE}, {CBS}
    s_add_u32 s74, s74, {CB0}
    v_and_b32 v24, 31, v1
    v_lshrrev_b32 v25, 5, v1
    v_lshlrev_b32 v24, 4, v24
    v_sub_u32 v24, s74, v24
    v_lshlrev_b32 v26, 9, v25
    v_sub_u32 v27, v24, v26
    v_sub_u32 v28, v27, v26
    v_and_b32 v26, 1, v1
    v_cmp_eq_u32 vcc, 1, v26''')
    def cv(d, a, b): k(f'v_cvt_pk_bf16_f32 v{d}, v{a}, v{b}')
    def w(addr, r, off): k(f'ds_write_b128 v{addr}, v[{r}:{r+3}] offset:{off}')
    V = [A + i for i in range(8)] + [A + 15]
    for i in range(4): cv(32 + i, V[7 - 2 * i], V[6 - 2 * i])
    w(27, 32, KC0 + 4080)
    for i in range(4): cv(36 + i, V[8 - 2 * i], V[7 - 2 * i])
    w(27, 36, KC1 + 4080)
    W0, W4, W8 = A + 8, A + 9, A + 10
    cv(40, W8, W8); cv(41, W4, W4); cv(42, W4, W0); cv(43, W0, W0)
    w(27, 40, KC0 + 4080 - 1024)
    k('v_mov_b32 v44, v40'); cv(45, W8, W4); k('v_mov_b32 v46, v41\nv_mov_b32 v47, v43')
    w(27, 44, KC1 + 4080 - 1024)
    for q, (X0, X8) in enumerate(((A + 11, A + 12), (A + 13, A + 14))):
        r = 48 + 12 * q
        k(f'v_cndmask_b32 v{r+8}, v{X0}, v{X8}, vcc')
        cv(r, X8, X8); cv(r + 1, X8, r + 8); cv(r + 2, X0, X0); k(f'v_mov_b32 v{r+3}, v{r+2}')
        w(28, r, KC0 + 4080 - 2048 - 512 * q)
        k(f'v_mov_b32 v{r+4}, v{r}\nv_mov_b32 v{r+5}, v{r}'); cv(r + 6, r + 8, X0); k(f'v_mov_b32 v{r+7}, v{r+2}')
        w(28, r + 4, KC1 + 4080 - 2048 - 512 * q)
    k(f'''v_mov_b32 v72, 0
    v_mov_b32 v73, 0
    v_lshl_add_u32 v74, v1, 3, s74
    ds_write_b64 v74, v[72:73]
    v_cvt_pk_bf16_f32 v75, v{A}, v72
    v_cmp_eq_u32 vcc, 0, v1
    v_lshl_add_u32 v74, v1, 2, s74
    v_cndmask_b32 v75, v72, v75, vcc
    s_mov_b64 exec, 0xffff
    ds_write_b32 v74, v72 offset:{KC0 + 4096}
    ds_write_b32 v74, v75 offset:{KC1 + 4096}
    s_mov_b64 exec, -1''')
def uprep(k):
    n = k.lab('st')
    k(f's_mov_b32 s75, 0\n{n}:')
    k(f'v_cmp_ne_u32 vcc, s{S_TAG}, v{VG+1}')
    for r in (3, 5, 7, 9, 11, 13, 15):
        k(f'v_cmp_ne_u32 s[76:77], s{S_TAG}, v{VG+r}\ns_or_b64 vcc, vcc, s[76:77]')
    k(f'''s_cbranch_vccz {n}_ok
    s_add_u32 s75, s75, 1
    s_cmp_gt_u32 s75, 0x40000
    s_cbranch_scc1 {n}_ok''')
    stats_loads(k)
    k(f's_waitcnt vmcnt(0)\ns_branch {n}\n{n}_ok:')
    stamp(k, 9)
    k(f'''s_lshl_b32 s76, s72, 16
    s_and_b32 s78, s72, 0xffff0000
    s_mov_b32 s77, s76
    s_mov_b32 s79, s78
    s_lshl_b32 s70, s73, 16
    s_and_b32 s72, s73, 0xffff0000
    s_mov_b32 s71, s70
    s_mov_b32 s73, s72
    v_lshlrev_b32 v24, 2, v0
    v_add_u32 v24, {CB0 + 512}, v24''')
    DS = ['s[76:77]', 's[78:79]', 's[70:71]', 's[72:73]']
    for j in range(4):
        g = VG + 4 * j; M, RC = 32 + 4 * (j & 1), 34 + 4 * (j & 1)
        k(f'''v_and_b32 v{RC}, 0xffff0000, v{g}
        v_and_b32 v{RC+1}, 0xffff0000, v{g+2}
        v_rcp_f32 v{RC}, v{RC}
        v_rcp_f32 v{RC+1}, v{RC+1}
        v_lshlrev_b32 v{M}, 16, v{g}
        v_lshlrev_b32 v{M+1}, 16, v{g+2}''')
        for c in range(4):
            xs = VPRE + 8 * j + 2 * c; t = 40 + 2 * c + 8 * (j & 1)
            for e in range(2):
                src = VX + 4 * j + 2 * e + (c >> 1)
                k(f'v_and_b32 v{xs+e}, 0xffff0000, v{src}' if c & 1 else f'v_lshlrev_b32 v{xs+e}, 16, v{src}')
            k(pk('add', t, xs, M, None, 'neg_lo:[0,1] neg_hi:[0,1]'))
            k(pk('mul', t, t, RC))
            k(f'v_cvt_pk_bf16_f32 v{56+c+4*(j&1)}, v{t}, v{t+1}')
            k(pk('fma', xs, t, DS[c], xs))
            k(f'ds_write_b32 v24, v{56+c+4*(j&1)} offset:{c*CBS + j*1024}')
def conv(k):
    NA = 24
    k(f'''v_and_b32 v24, 15, v1
    v_lshrrev_b32 v25, 4, v1
    v_lshlrev_b32 v26, 5, v24
    v_lshl_add_u32 v26, v25, 4, v26
    v_add_u32 v26, s74, v26
    v_lshlrev_b32 v27, 3, v25
    v_sub_u32 v27, v27, v24
    v_add_u32 v27, 2031, v27
    v_and_b32 v28, 1, v27
    s_movk_i32 s65, {4160 + 2}
    v_mul_lo_u32 v28, v28, s65
    v_lshl_add_u32 v27, v27, 1, v28
    v_add_u32 v27, s74, v27''')
    for i in range(4): k(f'v_add_u32 v{28+i}, {KC0 - 1024*(i+1) + 64}, v27')
    def rdA(e):
        r = 32 + 4 * (e % NA); i = e // 16; o = (15 - e % 16) * 16
        return [f'ds_read2_b32 v[{r}:{r+1}], v{28+i} offset0:{o} offset1:{o+1}', f'ds_read2_b32 v[{r+2}:{r+3}], v{28+i} offset0:{o+2} offset1:{o+3}']
    def rdB(q): return [f'ds_read_b128 a[{4*(q+7)}:{4*(q+7)+3}], v26 offset:{2*(240+32*q)}']
    mf = []
    for e in range(64):
        for b in range(8):
            if e <= 8 * b + 7: mf.append((e, b))
    loads = []; seenA = set(); seenB = set()
    for idx, (e, b) in enumerate(mf):
        if e not in seenA: seenA.add(e); loads += [(l, ('A', e)) for l in rdA(e)]
        q = 8 * b - e
        if q not in seenB: seenB.add(q); loads += [(l, ('B', q)) for l in rdB(q)]
    lastuse = {}
    for idx, (e, b) in enumerate(mf): lastuse[e] = idx
    li = 0
    def can(idx):
        l, (t, v) = loads[li]
        return t == 'B' or v < NA or lastuse[v - NA] < idx
    for _ in range(12): k(loads[li][0]); li += 1
    started = set()
    for idx, (e, b) in enumerate(mf):
        r = 32 + 4 * (e % NA); q = 8 * b - e; acc = 128 + 4 * b
        c = f'v[{acc}:{acc+3}]' if b in started else '0'
        started.add(b)
        k(f'v_mfma_f32_16x16x32_bf16 v[{acc}:{acc+3}], v[{r}:{r+3}], a[{4*(q+7)}:{4*(q+7)+3}], {c}')
        nl = 1 if (idx % 8) else 2
        if idx >= 64: nl = 1 if idx % 2 == 0 else 0
        if idx < 64 and idx % 4 == 0: nl = 2
        for _ in range(nl):
            if li < len(loads) and can(idx + 1): k(loads[li][0]); li += 1
    assert li == len(loads), (li, len(loads))
def conv_out(k):
    k(f'''v_and_b32 v24, 15, v1
    v_lshrrev_b32 v25, 4, v1
    s_movk_i32 s65, 80
    v_mul_lo_u32 v24, v24, s65
    v_lshl_add_u32 v24, v25, 4, v24
    v_add_u32 v24, s74, v24
    v_lshrrev_b32 v25, 3, v0
    v_mul_lo_u32 v25, v25, s65
    v_and_b32 v26, 7, v0
    v_lshl_add_u32 v25, v26, 3, v25
    v_add_u32 v25, {CB0}, v25''')
    for b in range(8): k(f'ds_write_b128 v24, v[{128+4*b}:{131+4*b}] offset:{b*1280}')
    k(f'''s_lshl_b32 s64, s{S_CG}, 14
    s_add_u32 s64, s64, {hex(WS_HP)}
    v_lshlrev_b32 v26, 4, v0
    s_waitcnt lgkmcnt(0)
    s_barrier''')
    for j in range(4):
        for c in range(4): k(f'ds_read_b64 v[{32+8*j+2*c}:{33+8*j+2*c}], v25 offset:{c*CBS + j*2560}')
    for j in range(4):
        for c in range(4): k(pk('add', 32 + 8 * j + 2 * c, 32 + 8 * j + 2 * c, VPRE + 8 * j + 2 * c))
        o = 64 + 4 * j; y = 32 + 8 * j
        for e in range(2):
            k(f'v_cvt_pk_bf16_f32 v{o+2*e}, v{y+e}, v{y+2+e}\nv_cvt_pk_bf16_f32 v{o+2*e+1}, v{y+4+e}, v{y+6+e}')
        k(f'buffer_store_dwordx4 v[{o}:{o+3}], v26, {srd(R_WS)}, s64 offen sc1')
        if j < 3: k('s_add_u32 s64, s64, 4096')
def publish(k, soff_expr_lines, sreg):
    L = k.lab('pub')
    k(soff_expr_lines)
    k(f'''s_waitcnt vmcnt(0)
    s_barrier
    s_cmp_lg_u32 s{S_WAVE}, 0
    s_cbranch_scc1 {L}
    v_mov_b32 v2, s{S_TAG}
    v_mov_b32 v3, 0
    s_mov_b64 exec, 1
    ;@maybe_begin
    buffer_store_dword v2, v3, {srd(R_WS)}, s{sreg} offen sc1
    ;@maybe_end
    s_mov_b64 exec, -1
    {L}:''')
def conv_wg(k, mid=None):
    conv_loads(k)
    ln1(k)
    if cfg.slicelate: slice_loads(k)
    stamp(k, 1)
    kgen(k)
    k('s_barrier')
    stamp(k, 2)
    kwrite(k)
    stamp(k, 8)
    uprep(k)
    k('s_waitcnt lgkmcnt(0)\ns_barrier')
    stamp(k, 3)
    L = k.lab('ep')
    k(f'''s_or_b32 s64, s2, s{S_WAVE}
    s_cbranch_scc1 {L}
    v_mov_b32 v2, s{S_TAG}
    v_mov_b32 v3, 0
    s_mov_b64 exec, 1
    ;@maybe_begin
    buffer_store_dword v2, v3, {srd(R_WS)}, 0 offen sc1
    ;@maybe_end
    s_mov_b64 exec, -1
    {L}:''')
    if mid: mid(k)
    conv(k)
    stamp(k, 4)
    conv_out(k)
    publish(k, f's_lshl_b32 s64, s{S_CG}, 2\ns_add_u32 s64, s64, {hex(WS_FLAGH)}', 64)
    stamp(k, 5)
```

```python
from common import *
from p_conv import publish, Buf
S_RB, S_C, S_WB = 61, 62, 63
RING = 144
SCR = RING * 1024
VH = 96
ACC = 32
VL0, VL1, VL2 = 3, 4, 5
VST, VK1, VK3, VD2, VBM = 8, 9, 10, 11, 12
VGR = 16
NA = 8
def ids(k):
    k(f'''s_lshr_b32 s64, s{S_XCD}, 1
    s_lshl_b32 s64, s64, 2
    s_and_b32 s65, s{S_I}, 3
    s_add_u32 s{S_RB}, s64, s65
    s_and_b32 s64, s{S_XCD}, 1
    s_lshl_b32 s64, s64, 3
    s_lshr_b32 s65, s{S_I}, 2
    s_add_u32 s{S_C}, s64, s65
    s_mul_i32 s64, s{S_C}, 7
    s_lshr_b32 s65, s{S_C}, 2
    s_sub_u32 s64, s64, s65
    s_mul_i32 s{S_WB}, s64, {41*1024}
    s_lshl_b32 s65, s{S_WAVE}, 12
    s_add_u32 s{S_WB}, s{S_WB}, s65
    s_add_u32 s{S_WB}, s{S_WB}, {hex(WS_WP)}''')
def poll(k, addr, nquad, vt=20):
    L = k.lab('poll')
    k(f'''s_cmp_lg_u32 s{S_WAVE}, 0
    s_cbranch_scc1 {L}_ok
    ;@push
    v_min_u32 v{vt+4}, {nquad-1}, v1
    v_lshlrev_b32 v{vt+4}, 4, v{vt+4}
    s_mov_b32 s64, {addr}
    s_mov_b32 s65, 0
    {L}:
    buffer_load_dwordx4 v[{vt}:{vt+3}], v{vt+4}, {srd(R_WS)}, s64 offen sc1
    s_add_u32 s65, s65, 1
    s_waitcnt vmcnt(0)
    v_cmp_ne_u32 vcc, s{S_TAG}, v{vt}''')
    for r in (1, 2, 3): k(f'v_cmp_ne_u32 s[66:67], s{S_TAG}, v{vt+r}\ns_or_b64 vcc, vcc, s[66:67]')
    k(f'''s_cbranch_vccz {L}_ok
    s_cmp_lt_u32 s65, 0x40000
    s_cbranch_scc1 {L}
    ;@pop
    {L}_ok:
    s_barrier''')
def dma_round(R):
    o = [f's_add_u32 s64, s{S_WB}, {R*16384}', f's_lshl_b32 s65, s{S_WAVE}, 12', f's_add_u32 m0, s65, {(R % 9)*16384}']
    for p in range(4): o += [f';@tag r{R}', f'buffer_load_dwordx4 v{VL0}, {srd(R_WS)}, s64 offen offset:{p*1024} sc1 lds']
    return o
def rdA(seq, f):
    s = f % RING; r = 4 * (seq % NA)
    return f'ds_read_b128 a[{r}:{r+3}], v{VL0 + s // 64} offset:{(s % 64)*1024}'
def epi(u):
    A = ACC + 16 * (u % 4); q = Buf()
    for g in range(2):
        t = 20 + 4 * g; E = range(4 * g, 4 * g + 4)
        for j in E: q(f'v_mul_f32 v{t+j%4}, v{A+j}, v{A+j}')
        for j in E: q(f'v_fma_f32 v{t+j%4}, v{t+j%4}, v{VK3}, v{VK1}')
        for j in E: q(f'v_mul_f32 v{t+j%4}, v{A+j}, v{t+j%4}')
        for j in E: q(f'v_exp_f32 v{t+j%4}, v{t+j%4}\nv_mul_f32 v{A+8+j}, v{A+j}, v{A+8+j}')
        for j in E: q(f'v_fma_f32 v{t+j%4}, v{t+j%4}, v{VD2}, v{VD2}')
        for j in E: q(f'v_rcp_f32 v{t+j%4}, v{t+j%4}')
        for j in E: q(f'v_mul_f32 v{A+8+j}, v{A+8+j}, v{t+j%4}')
        for j in range(2 * g, 2 * g + 2): q(f'v_cvt_pk_bf16_f32 v{A+j}, v{A+8+2*j}, v{A+9+2*j}')
    q(f's_add_u32 s70, s68, {u*65536}')
    q(f'buffer_store_dwordx4 v[{A}:{A+3}], v{VST}, {srd(R_WS)}, s70 offen sc1')
    return q.L
def s2_fin():
    q = Buf()
    q(f'''ds_read2_b64 v[20:23], v28 offset0:0 offset1:8
    ds_read2_b64 v[24:27], v28 offset0:16 offset1:24
    v_add_f32 v20, v20, v22
    v_add_f32 v21, v21, v23
    v_add_f32 v24, v24, v26
    v_add_f32 v25, v25, v27
    v_add_f32 v20, v20, v24
    v_add_f32 v21, v21, v25
    v_mul_f32 v20, {fl(1/D)}, v20
    v_mul_f32 v21, {fl(1/D)}, v21
    v_fma_f32 v21, -v20, v20, v21
    v_max_f32 v21, 0, v21
    v_cvt_pk_bf16_f32 v21, v21, v21
    v_and_b32 v21, 0xffff0000, v21
    v_add_f32 v21, {fl(1e-5)}, v21
    v_cvt_pk_bf16_f32 v21, v21, v21
    v_and_b32 v21, 0xffff0000, v21
    v_sqrt_f32 v21, v21
    v_mov_b32 v23, s{S_TAG}
    v_cvt_pk_bf16_f32 v22, v20, v21
    s_mov_b64 exec, s[72:73]
    ;@maybe_begin
    buffer_store_dwordx2 v[22:23], v29, {srd(R_WS)}, s71 offen sc1
    ;@maybe_end
    s_mov_b64 exec, -1''')
    return q.L
def gr_load(): return [f'buffer_load_dwordx2 v[{VGR}:{VGR+1}], v18, {srd(R_WS)}, s69 offen sc1']
def gr_wait(k):
    L = k.lab('gr'); q = Buf()
    q(f'''s_mov_b32 s65, 0
    {L}:
    v_cmp_ne_u32 vcc, s{S_TAG}, v{VGR+1}
    s_add_u32 s65, s65, 1
    s_cbranch_vccz {L}_ok
    s_cmp_gt_u32 s65, 0x40000
    s_cbranch_scc1 {L}_ok
    ;@push
    {gr_load()[0]}
    s_waitcnt vmcnt(0)
    s_branch {L}
    ;@pop
    {L}_ok:''')
    c = 2 * LOG2E * math.sqrt(2 / math.pi)
    q(f'''v_and_b32 v{VD2}, 0xffff0000, v{VGR}
    v_rcp_f32 v{VK3}, v{VD2}
    v_and_b32 v{VBM+1}, 0xffff, v{VGR}
    v_xor_b32 v{VBM+1}, 0x8000, v{VBM+1}
    v_lshl_or_b32 v{VBM}, v{VBM+1}, 16, v{VBM+1}
    v_mul_f32 v{VK1}, {fl(-c)}, v{VK3}
    v_mul_f32 v{VK3}, v{VK3}, v{VK3}
    v_mul_f32 v{VD2}, v{VD2}, v{VD2}
    v_mul_f32 v{VK3}, {fl(0.044715)}, v{VK3}
    v_mul_f32 v{VK3}, v{VK3}, v{VK1}''')
    return q.L
def gemm1(k, extra=None):
    ids(k)
    k(f'''v_lshlrev_b32 v{VL0}, 4, v1
    v_add_u32 v{VL1}, 0x10000, v{VL0}
    v_add_u32 v{VL2}, 0x20000, v{VL0}''')
    poll(k, hex(WS_FLAGW), 24)
    for R in range(9):
        for l in dma_round(R): k(l)
    k(f'''v_and_b32 v6, 15, v1
    v_lshrrev_b32 v7, 4, v1
    v_and_b32 v2, 1, v7
    v_lshl_add_u32 v2, v6, 1, v2
    v_lshlrev_b32 v18, 3, v2
    v_lshrrev_b32 v{VST}, 5, v1
    v_lshlrev_b32 v{VST}, 4, v{VST}
    v_lshl_add_u32 v{VST}, v2, 5, v{VST}
    v_lshlrev_b32 v7, 14, v7
    v_lshl_add_u32 v7, v6, 4, v7
    v_lshrrev_b32 v6, 2, v1
    v_and_b32 v2, 3, v1
    v_lshlrev_b32 v30, 14, v6
    v_lshl_add_u32 v30, v2, 4, v30
    v_mov_b32 v31, 0x10000000
    v_cmp_gt_u32 vcc, 8, v6
    v_cndmask_b32 v31, v31, v30, vcc
    v_mov_b32 v{VBM+2}, 0
    v_mov_b32 v{VBM+3}, 0
    v_and_b32 v29, 7, v1
    v_lshlrev_b32 v29, 3, v29
    v_add_u32 v28, {SCR}, v29
    s_lshl_b32 s64, s{S_WAVE}, 6
    s_add_u32 s64, s64, {SCR}
    v_lshl_add_u32 v6, v2, 4, s64
    s_mul_i32 s64, s{S_C}, 7
    s_lshr_b32 s65, s{S_C}, 2
    s_sub_u32 s64, s64, s65
    s_lshl_b32 s68, s64, 16
    s_lshl_b32 s64, s{S_RB}, 12
    s_lshl_b32 s65, s{S_WAVE}, 10
    s_add_u32 s68, s68, s64
    s_add_u32 s68, s68, s65
    s_add_u32 s68, s68, {hex(WS_ACT)}
    s_lshl_b32 s64, s{S_RB}, 10
    s_lshl_b32 s65, s{S_WAVE}, 8
    s_add_u32 s69, s64, s65
    s_add_u32 s74, s69, {hex(WS_HP)}
    s_add_u32 s69, s69, {hex(WS_ST2)}
    s_lshl_b32 s65, s{S_C}, 6
    s_add_u32 s71, s64, s65
    s_mul_i32 s65, s{S_WAVE}, {40*16384}
    s_add_u32 s75, s71, s65
    s_add_u32 s75, s75, {hex(WS_HP)}
    s_add_u32 s71, s71, {hex(WS_ST2)}
    s_add_u32 s76, s75, {16*16384}
    s_add_u32 s77, s75, {32*16384}
    s_cmp_eq_u32 s{S_WAVE}, 0
    s_cselect_b32 s72, 0xff, 0
    s_mov_b32 s73, 0''')
    stamp(k, 10)
    poll(k, hex(WS_FLAGH), 40)
    stamp(k, 11)
    for j in range(3):
        k(f'buffer_load_dwordx4 v[{ACC+4*j}:{ACC+4*j+3}], v{31 if j == 2 else 30}, {srd(R_WS)}, s{75+j} offen sc1')
    for ks in range(40):
        k(f'buffer_load_dwordx4 v[{VH+4*ks}:{VH+4*ks+3}], v7, {srd(R_WS)}, s74 offen sc1')
        if ks < 39: k('s_add_u32 s74, s74, 0x10000')
    k('s_mov_b32 s64, 0x3f803f80')
    for j in range(3):
        for e in range(2):
            for r in range(2):
                x = ACC + 4 * j + 2 * e + r; first = (j == 0 and r == 0)
                k(f'v_dot2_f32_bf16 v{20+2*e}, v{x}, s64, ' + ('0' if first else f'v{20+2*e}'))
                k(f'v_dot2_f32_bf16 v{21+2*e}, v{x}, v{x}, ' + ('0' if first else f'v{21+2*e}'))
    for sh in (4, 8):
        for r in range(20, 24): k(f'v_add_f32 v{r}, v{r}, v{r} row_ror:{sh}')
    for op in ('v_permlane16_swap_b32', 'v_permlane32_swap_b32'):
        for r in range(20, 24): k(f'v_mov_b32 v{r+4}, v{r}')
        for r in range(20, 24): k(f'{op} v{r}, v{r+4}')
        for r in range(20, 24): k(f'v_add_f32 v{r}, v{r}, v{r+4}')
    k(f'''s_mov_b64 exec, 15
    ds_write_b128 v6, v[20:23]
    s_mov_b64 exec, -1
    ;@waitvm r8
    s_waitcnt lgkmcnt(0)
    s_barrier''')
    seq = []
    for ks in range(40):
        for u in range(3): seq.append((u, ks))
    for u in range(3): seq.append((u, 40))
    for u in range(3, 7):
        for ks in range(41): seq.append((u, ks))
    n = len(seq); DIST = 6
    fill = [[] for _ in range(n)]
    pre = [[] for _ in range(n)]
    def swaps(ks):
        b = VH + 4 * ks
        return [f'v_permlane16_swap_b32 v{b}, v{b+2}', f'v_permlane16_swap_b32 v{b+1}, v{b+3}']
    for ks in range(1, 40): fill[3 * (ks - 1)] += swaps(ks)
    def spread(L, a, b):
        G = []; cur = []
        for l in L:
            cur.append(l)
            if not l.startswith(';@') and not l.startswith('s_'): G.append(cur); cur = []
        if cur: G[-1] += cur
        m = len(G)
        for i, g in enumerate(G): fill[a + i * (b - a) // m] += g
    fin = s2_fin()
    fill[0] += fin[:2]
    spread(fin[2:], 3, 12)
    def bar(i, wait=None, rounds=()):
        L = ([f';@waitvm r{wait}'] if wait is not None else []) + ['s_barrier']
        fill[i] += L
        for j, R in enumerate(rounds): spread(dma_round(R), i + 1 + 4 * j, i + 5 + 4 * j)
    bar(47, None, [9]); bar(95, None, [10])
    fill[104] += gr_load()
    pre[120] += gr_wait(k)
    bar(122, 10, [11, 12, 13, 14, 15])
    bar(167, 12, [16, 17])
    bar(201, 15)
    bar(249, 17)
    E = []
    for u in range(5): E += epi(u)
    spread(E, 124, 246)
    spread(epi(5), 247, 283)
    if extra: spread(extra, 176, 244)
    for i in range(DIST): k(rdA(i, seq[i][0] * 41 + seq[i][1]))
    for l in swaps(0): k(l)
    L6, LJ = k.lab('u6'), k.lab('uj')
    for i, (u, ks) in enumerate(seq):
        if i == 246:
            k(f's_and_b32 s64, s{S_C}, 3\ns_cmp_eq_u32 s64, 3\ns_cbranch_scc1 {L6}\n;@push')
        for l in pre[i]: k(l)
        a = 4 * (i % NA); acc = ACC + 16 * (u % 4)
        b = f'v[{VH+4*ks}:{VH+4*ks+3}]' if ks < 40 else f'v[{VBM}:{VBM+3}]'
        k(f'v_mfma_f32_32x32x16_bf16 v[{acc}:{acc+15}], a[{a}:{a+3}], {b}, ' + ('0' if ks == 0 else f'v[{acc}:{acc+15}]'))
        if i + DIST < n: k(rdA(i + DIST, seq[i + DIST][0] * 41 + seq[i + DIST][1]))
        for l in fill[i]: k(l)
        if i == 119: stamp(k, 12)
    for l in epi(6): k(l)
    k(f's_branch {LJ}\n;@pop\n{L6}:')
    for l in epi(5): k(l)
    k(f'{LJ}:\ns_waitcnt lgkmcnt(0)')
    stamp(k, 13)
    publish(k, f's_lshl_b32 s64, s{S_RB}, 7\ns_lshl_b32 s65, s{S_C}, 2\ns_add_u32 s64, s64, s65\ns_add_u32 s64, s64, {hex(WS_FLAGA)}', 64)
    k(';@forget')
    stamp(k, 14)
```

```python
from common import *
from p_conv import Buf
import p_g1
S_TB, S_CB = 78, 79
VWA = 19
NPRE = 56
ACC2 = 32
VFIN = 72
VRES = 104
PITCH = 336; WREG = 16 * PITCH; BREG = 4 * WREG
def wreg(q): return f'a[{32+4*q}:{35+4*q}]' if q < NPRE else f'v[{200+4*(q-NPRE)}:{203+4*(q-NPRE)}]'
RINGB = [f'v[{120+4*i}:{123+4*i}]' for i in range(20)] + [f'a[{4*i}:{4*i+3}]' for i in range(8)]
def setup(k):
    k(f'''s_lshl_b32 s{S_TB}, s{S_XCD}, 2
    s_and_b32 s64, s{S_I}, 3
    s_add_u32 s{S_TB}, s{S_TB}, s64
    s_lshr_b32 s{S_CB}, s{S_I}, 2
    s_mul_i32 s64, s{S_WAVE}, {14*40960}
    s_mul_i32 s65, s{S_CB}, 5120
    s_add_u32 s64, s64, s65
    v_lshl_add_u32 v{VWA}, v1, 4, s64
    s_movk_i32 s100, 4096''')
    k.srd(R_A, 54 * 40960, base=S_WS, off=WS_WDP)
    k.srd(R_B, 108 * 65536, base=S_WS, off=WS_ACT)
def wd_loads(q0, q1):
    o = []
    for q in range(q0, q1):
        kk, j = divmod(q, 5)
        o.append(f'buffer_load_dwordx4 {wreg(q)}, v{VWA}, {srd(R_A)}, ' + (f'0 offen offset:{j*1024} sc1' if j < 4 else 's100 offen sc1'))
        if j == 4: o.append(f'v_add_u32 v{VWA}, 40960, v{VWA}')
    return o
def gemm2(k):
    for l in wd_loads(NPRE, 70): k(l)
    k(f'''v_and_b32 v6, 15, v1
    v_lshrrev_b32 v7, 4, v1
    v_and_b32 v8, 1, v7
    v_lshrrev_b32 v9, 5, v1
    v_lshlrev_b32 v9, 16, v9
    v_lshl_add_u32 v9, v8, 4, v9
    v_lshl_add_u32 v9, v6, 5, v9
    s_mul_i32 s64, s{S_WAVE}, {28*65536}
    s_lshl_b32 s65, s{S_TB}, 11
    s_add_u32 s64, s64, s65
    v_add_u32 v9, s64, v9
    s_movk_i32 s65, {PITCH}
    v_mul_lo_u32 v10, v6, s65
    v_lshl_add_u32 v10, v7, 4, v10
    s_mul_i32 s64, s{S_WAVE}, {WREG}
    v_add_u32 v10, s64, v10
    v_min_u32 v11, 39, v1
    v_mul_u32_u24 v12, 205, v11
    v_lshrrev_b32 v12, 11, v12
    v_mul_u32_u24 v13, 10, v12
    v_sub_u32 v13, v11, v13
    s_lshl_b32 s64, s{S_WAVE}, 2
    v_add_u32 v12, s64, v12
    v_mul_lo_u32 v11, v12, s65
    v_lshl_add_u32 v11, v13, 5, v11
    s_lshl_b32 s64, s{S_TB}, 6
    v_add_u32 v12, s64, v12
    v_lshlrev_b32 v14, 15, v13
    v_lshl_add_u32 v14, v12, 3, v14
    s_mul_i32 s68, s{S_CB}, {20*16384}
    s_add_u32 s68, s68, {hex(WS_HP)}
    s_add_u32 s69, s68, 16384
    s_movk_i32 s65, 1280
    v_mul_lo_u32 v12, v12, s65
    v_lshl_add_u32 v12, v13, 4, v12
    s_mul_i32 s70, s{S_CB}, 160
    s_mov_b32 s72, -1
    s_movk_i32 s73, 0xff''')
    for b in range(4):
        for e in range(2):
            k(f'buffer_load_dwordx2 v[{VRES+4*b+2*e}:{VRES+4*b+2*e+1}], v14, {srd(R_WS)}, s{68+e} offen offset:{b*128} sc1')
    k(f's_lshr_b32 s74, s{S_TB}, 1\ns_lshl_b32 s74, s74, 7\ns_add_u32 s74, s74, {hex(WS_FLAGA)}')
    p_g1.poll(k, 's74', 4)
    stamp(k, 15)
    NR = len(RINGB)
    def ld(i):
        b, kk = divmod(i, 14); a = 16 + (i & 3)
        return [f'v_add_u32 v{a}, {kk*131072}, v9', f'buffer_load_dwordx4 {RINGB[i % NR]}, v{a}, {srd(R_B)}, 0 offen offset:{b*512} sc1']
    for i in range(NR):
        for l in ld(i): k(l)
    def wr(b):
        A = ACC2 + 20 * (b & 1)
        return [f'ds_write_b128 v10, v[{A+4*j}:{A+4*j+3}] offset:{(b%3)*BREG + j*64}' for j in range(5)]
    def fin(b):
        q = Buf(); F = VFIN
        for w in range(4):
            for e in range(2): q(f'ds_read_b128 v[{F+8*w+4*e}:{F+8*w+4*e+3}], v11 offset:{(b%3)*BREG + w*WREG + e*16}')
        for r in range(8): q(f'v_add_f32 v{F+r}, v{F+r}, v{F+8+r}')
        for r in range(8): q(f'v_add_f32 v{F+16+r}, v{F+16+r}, v{F+24+r}')
        for r in range(8):
            x = VRES + 4 * b + r // 2
            q(f'v_and_b32 v{F+8+r}, 0xffff0000, v{x}' if r & 1 else f'v_lshlrev_b32 v{F+8+r}, 16, v{x}')
        for r in range(8): q(f'v_add_f32 v{F+r}, v{F+r}, v{F+16+r}')
        for r in range(8): q(f'v_add_f32 v{F+r}, v{F+r}, v{F+8+r}')
        for r in range(4): q(f'v_cvt_pk_bf16_f32 v{F+24+r}, v{F+2*r}, v{F+2*r+1}')
        q(f'''s_add_u32 s71, s70, {b*16*1280}
        s_mov_b64 exec, s[72:73]
        buffer_store_dwordx4 v[{F+24}:{F+27}], v12, {srd(R_OUT)}, s71 offen
        s_mov_b64 exec, -1''')
        return q.L
    n = 280
    fill = [[] for _ in range(n)]
    def spread(L, a, b):
        G = []; cur = []
        for l in L:
            cur.append(l)
            if not l.startswith(';@') and not l.startswith('s_'): G.append(cur); cur = []
        if cur: G[-1] += cur
        for i, g in enumerate(G): fill[a + i * (b - a) // len(G)] += g
    for i in range(NR, 56): fill[5 * (i - NR) + 4] += ld(i)
    for b in range(3):
        s = 70 * (b + 1)
        spread(wr(b), s + 2, s + 12)
        fill[s + 16] += ['s_waitcnt lgkmcnt(0)', 's_barrier']
        spread(fin(b), s + 17, s + 69)
    for i in range(n):
        fr, j = divmod(i, 5); b, kk = divmod(fr, 14); A = ACC2 + 20 * (b & 1) + 4 * j
        k(f'v_mfma_f32_16x16x32_bf16 v[{A}:{A+3}], {wreg(kk*5+j)}, {RINGB[fr % NR]}, ' + ('0' if kk == 0 else f'v[{A}:{A+3}]'))
        for l in fill[i]: k(l)
    for l in wr(3): k(l)
    k('s_waitcnt lgkmcnt(0)\ns_barrier')
    for l in fin(3): k(l)
    if cfg.prof:
        k('s_waitcnt vmcnt(0)'); stamp(k, 9)
```

```python
from common import *
V_LANE = 1
def prologue(k, end_label):
    n = k.name
    k(f'''s_cmp_ge_u32 s2, 256
    s_cbranch_scc1 {end_label}
    s_load_dwordx16 s[4:19], s[0:1], 0
    s_load_dwordx16 s[20:35], s[0:1], 64
    s_getpc_b64 s[62:63]
    {n}_pc0:
    s_lshr_b32 s{S_I}, s2, 3
    s_and_b32 s{S_XCD}, s2, 7
    v_lshrrev_b32 v2, 6, v0
    v_and_b32 v1, 63, v0
    s_lshl_b32 s64, s{S_I}, 12
    v_lshl_add_u32 v4, v0, 4, s64
    v_readfirstlane_b32 s{S_WAVE}, v2
    v_min_u32 v4, {n}_last-{n}_pc0-16, v4
    v_mov_b32 v5, s63
    v_add_co_u32 v4, vcc, s62, v4
    v_addc_co_u32 v5, vcc, 0, v5, vcc
    v_mov_b32 v250, v4
    v_mov_b32 v251, v5''')
    if cfg.warm == 0: k('global_load_dwordx4 v[252:255], v[250:251], off')
    prof_init(k)
    k(f'''v_lshrrev_b32 v4, 5, v0
    s_lshl_b32 s64, s2, 3
    v_add_u32 v14, s64, v4
    s_movk_i32 s65, 1280
    v_mul_lo_u32 v2, v14, s65
    v_and_b32 v4, 31, v0
    v_lshl_add_u32 v15, v4, 3, v2
    v_lshl_add_u32 v2, v4, 4, v2
    v_mov_b32 v3, 0
    s_waitcnt lgkmcnt(0)''')
    k.srd(R_X, T * D * 2, base=S_X)
    k.srd(R_WS, WS_SIZE, base=S_WS)
    k(f'''buffer_load_dwordx4 v[4:7], v2, {srd(R_X)}, 0 offen
    buffer_load_dwordx4 v[8:11], v2, {srd(R_X)}, 0 offen offset:512
    buffer_load_dwordx2 v[12:13], v15, {srd(R_X)}, 0 offen offset:1024
    buffer_load_dword v3, v3, {srd(R_WS)}, 0 offen sc1''')
    if cfg.warm == 1: k('global_load_dwordx4 v[252:255], v[250:251], off')
    k.srd(R_OUT, T * D * 2, base=S_OUT)
    stamp(k, 0)
def ln1(k):
    k('s_mov_b32 s62, 0x3f803f80\nv_mov_b32 v16, 0\nv_mov_b32 v17, 0')
    for r in range(4, 14):
        k(f'v_dot2_f32_bf16 v16, v{r}, s62, v16\nv_dot2_f32_bf16 v17, v{r}, v{r}, v17')
    k(f's_mov_b32 s63, 1664525\nv_mul_lo_u32 v3, v3, s63\nv_lshlrev_b32 v14, 3, v14')
    for sh in (8, 4, 2, 1):
        k(f'v_add_f32 v16, v16, v16 row_ror:{sh}\nv_add_f32 v17, v17, v17 row_ror:{sh}')
    k(f'''v_add_u32 v3, 1013904223, v3
    v_mov_b32 v18, v16
    v_mov_b32 v19, v17
    v_readfirstlane_b32 s{S_TAG}, v3
    v_permlane16_swap_b32 v16, v18
    v_permlane16_swap_b32 v17, v19
    v_add_f32 v16, v16, v18
    v_add_f32 v17, v17, v19
    v_mul_f32 v16, {fl(1/D)}, v16
    v_mul_f32 v17, {fl(1/D)}, v17
    v_fma_f32 v17, -v16, v16, v17
    v_max_f32 v17, 0, v17
    v_cvt_pk_bf16_f32 v17, v17, v17
    v_and_b32 v17, 0xffff0000, v17
    v_add_f32 v17, {fl(1e-5)}, v17
    v_cvt_pk_bf16_f32 v17, v17, v17
    v_and_b32 v17, 0xffff0000, v17
    v_sqrt_f32 v17, v17
    s_mov_b32 exec_lo, 1
    s_mov_b32 exec_hi, 1
    s_movk_i32 s62, {hex(WS_STATS)}
    v_cvt_pk_bf16_f32 v2, v16, v17
    buffer_store_dwordx2 v[2:3], v14, {srd(R_WS)}, s62 offen sc1
    s_mov_b64 exec, -1''')
```

```python
from common import *
from p_pro import ln1
from p_conv import publish
WST = 20608
UPO = 10240 + 64
RED = 4 * WST
def rep_w_loads(k):
    k.srd(R_A, D * F * 2, base=S_WG); k.srd(R_B, D * F * 2, base=S_WU)
    k(f'''s_lshr_b32 s64, s{S_CG}, 1
    s_and_b32 s65, s{S_CG}, 1
    s_mul_i32 s66, s65, 320
    s_mul_i32 s67, s{S_WAVE}, 80
    s_add_u32 s66, s66, s67
    s_mul_i32 s66, s66, 3456
    s_lshl_b32 s67, s64, 7
    s_add_u32 s66, s66, s67
    s_mul_i32 s68, s{S_WAVE}, {WST}
    v_lshrrev_b32 v20, 3, v1
    s_movk_i32 s67, 3456
    v_mul_lo_u32 v20, v20, s67
    v_and_b32 v21, 7, v1
    v_lshl_add_u32 v20, v21, 4, v20''')
    for i in range(10):
        for m, R in ((0, R_A), (1, R_B)):
            k(f's_add_u32 m0, s68, {i*1024 + m*UPO}\ns_nop 0\n;@tag w{i//2}\nbuffer_load_dwordx4 v20, {srd(R)}, s66 offen lds')
        if i < 9: k(f's_add_u32 s66, s66, {8*3456}')
def rep_w(k):
    k(f'''v_lshrrev_b32 v20, 4, v1
    v_and_b32 v21, 1, v20
    s_movk_i32 s67, {UPO}
    v_mul_lo_u32 v21, v21, s67
    v_lshrrev_b32 v20, 1, v20
    v_lshl_add_u32 v21, v20, 10, v21
    v_bfe_u32 v20, v1, 2, 2
    v_lshl_add_u32 v21, v20, 7, v21
    v_and_b32 v20, 1, v1
    v_lshl_add_u32 v21, v20, 4, v21
    v_bfe_u32 v20, v1, 1, 1
    v_lshl_add_u32 v21, v20, 3, v21
    v_add_u32 v21, s68, v21
    v_lshlrev_b32 v22, 4, v1
    s_mul_i32 s69, s64, {4*41}
    s_mul_i32 s70, s65, 20
    s_add_u32 s70, s69, s70
    s_mul_i32 s71, s{S_WAVE}, 5
    s_add_u32 s70, s70, s71
    s_lshl_b32 s70, s70, 10
    s_add_u32 s70, s70, {hex(WS_WP)}''')
    for r in range(24, 28): k(f'v_mov_b32 v{r}, 0x3f803f80')
    for ks in range(5):
        k(f';@waitvm w{ks}')
        for u in range(4):
            fr = 32 + 16 * ks + 4 * u
            for q in range(2): k(f'ds_read_b64_tr_b16 v[{fr+2*q}:{fr+2*q+1}], v21 offset:{ks*2048 + q*512 + u*32}')
        for u in range(4):
            fr = 32 + 16 * ks + 4 * u; acc = 128 + 16 * u
            k(f's_add_u32 s71, s70, {(u*41 + ks)*1024}')
            k(f'buffer_store_dwordx4 v[{fr}:{fr+3}], v22, {srd(R_WS)}, s71 offen sc1')
            k(f'v_mfma_f32_32x32x16_bf16 v[{acc}:{acc+15}], v[24:27], v[{fr}:{fr+3}], ' + ('0' if ks == 0 else f'v[{acc}:{acc+15}]'))
    k(f'''v_and_b32 v20, 31, v1
    s_lshl_b32 s71, s{S_WAVE}, 9
    s_add_u32 s71, s71, {RED}
    v_lshl_add_u32 v23, v20, 2, s71''')
    for u in range(4): k(f'ds_write_b32 v23, v{128+16*u} offset:{u*128}')
    k(f'''s_lshl_b32 s71, s{S_WAVE}, 7
    s_add_u32 s71, s71, {RED}
    v_lshl_add_u32 v23, v20, 2, s71
    s_waitcnt lgkmcnt(0)
    s_barrier''')
    for w in range(4): k(f'ds_read_b32 v{24+w}, v23 offset:{w*512}')
    k(f'''s_mul_i32 s71, s{S_WAVE}, 41
    s_add_u32 s71, s71, s69
    s_add_u32 s71, s71, 40
    s_lshl_b32 s71, s71, 10
    s_lshl_b32 s72, s65, 9
    s_add_u32 s71, s71, s72
    s_add_u32 s71, s71, {hex(WS_WP)}
    v_add_f32 v24, v24, v25
    v_add_f32 v26, v26, v27
    v_add_f32 v24, v24, v26
    v_cvt_pk_bf16_f32 v25, v24, v24
    v_and_b32 v25, 0xffff0000, v25
    v_sub_f32 v24, v24, v25
    v_cvt_pk_bf16_f32 v28, v25, v24
    v_and_b32 v26, 0xffff0000, v28
    v_sub_f32 v24, v24, v26
    v_mov_b32 v30, 0
    v_mov_b32 v31, 0
    v_cvt_pk_bf16_f32 v29, v24, v30
    s_mov_b32 exec_hi, 0
    buffer_store_dwordx4 v[28:31], v22, {srd(R_WS)}, s71 offen sc1
    s_mov_b64 exec, -1''')
def rep_d_loads(k, second):
    k(f's_add_u32 s66, s64, {42 if second else 0}\ns_mul_i32 s66, s66, 40960\ns_add_u32 s66, s66, s68')
    for i in range(10):
        if i % 4 == 0: k(f's_add_u32 m0, s68, {i*1024 + (40960 if second else 0)}\ns_add_u32 s67, s66, {i*1024}')
        k(f'buffer_load_dwordx4 v22, {srd(R_A)}, s67 offen offset:{(i%4)*1024} lds')
def rep_d(k, second):
    o = 40960 if second else 0
    k(f's_add_u32 s66, s64, {42 if second else 0}\ns_mul_i32 s66, s66, 40960\ns_add_u32 s66, s66, s68\ns_add_u32 s66, s66, {hex(WS_WDP)}')
    for j in range(10):
        for q in range(2): k(f'ds_read_b64_tr_b16 v[{32+4*j+2*q}:{33+4*j+2*q}], v21 offset:{o + q*4*1280 + j*32}')
    for j in range(10):
        if j % 4 == 0: k(f's_add_u32 s67, s66, {j*1024}')
        k(f'buffer_store_dwordx4 v[{32+4*j}:{35+4*j}], v22, {srd(R_WS)}, s67 offen offset:{(j%4)*1024} sc1')
def repack_wg(k):
    LD, LJ = k.lab('wd'), k.lab('rj')
    k(f'''s_mul_i32 s{S_CG}, s{S_XCD}, 12
    s_add_u32 s{S_CG}, s{S_CG}, s{S_I}
    s_sub_u32 s{S_CG}, s{S_CG}, 20
    s_cmp_ge_u32 s{S_CG}, 54
    s_cbranch_scc1 {LD}
    ;@push''')
    rep_w_loads(k); ln1(k); stamp(k, 1); rep_w(k)
    k(f's_branch {LJ}\n;@pop\n{LD}:')
    k.srd(R_A, D * F * 2, base=S_WD)
    L1, L2 = k.lab('d1'), k.lab('d2')
    k(f'''s_sub_u32 s64, s{S_CG}, 54
    s_mul_i32 s68, s{S_WAVE}, 10240
    v_lshlrev_b32 v22, 4, v1''')
    rep_d_loads(k, False)
    k(f's_cmp_ge_u32 s64, 12\ns_cbranch_scc1 {L1}\n;@maybe_begin')
    rep_d_loads(k, True)
    k(f';@maybe_end\n{L1}:')
    ln1(k); stamp(k, 1)
    k(f'''v_lshrrev_b32 v20, 4, v1
    s_movk_i32 s67, 1280
    v_lshlrev_b32 v20, 3, v20
    v_bfe_u32 v21, v1, 2, 2
    v_add_u32 v20, v20, v21
    v_mul_lo_u32 v21, v20, s67
    v_and_b32 v20, 3, v1
    v_lshl_add_u32 v21, v20, 3, v21
    s_mul_i32 s67, s{S_WAVE}, 320
    v_add_u32 v21, s67, v21
    s_waitcnt vmcnt(0)
    s_barrier''')
    rep_d(k, False)
    k(f's_cmp_ge_u32 s64, 12\ns_cbranch_scc1 {L2}\n;@maybe_begin')
    rep_d(k, True)
    k(f';@maybe_end\n{L2}:\n{LJ}:')
    stamp(k, 4)
    publish(k, f's_lshl_b32 s64, s{S_CG}, 2\ns_add_u32 s64, s64, {hex(WS_FLAGW)}', 64)
    stamp(k, 5)
```

```python
import sys
from common import *
import asmpass, p_pro, p_conv
NAME = 'sequential_preLN__ssm_conv_s4__geglu_ffn__prompt_kernel'
def gen(path, **opt):
    for a, b in opt.items(): setattr(cfg, a, b)
    k = Kern(NAME, 256, 256, LDS_TOTAL, vgpr=256, agpr=256)
    END, FIN, REP, JOIN = NAME + '_end', NAME + '_fin', NAME + '_rep', NAME + '_join'
    p_pro.prologue(k, END)
    k(f's_cmp_ge_u32 s{S_I}, 20\ns_cbranch_scc1 {REP}')
    pre = list(k.L)
    p_conv.conv_wg(k)
    k(f's_branch {JOIN}')
    partA = k.L; k.L = []
    k(f'{REP}:')
    if cfg.stop == 'conv':
        p_pro.ln1(k)
    else:
        import p_rep
        p_rep.repack_wg(k)
    partB = k.L; k.L = []
    k(f'{JOIN}:')
    if cfg.stop not in ('conv', 'rep'):
        import p_g1, p_g2
        p_g2.setup(k)
        p_g1.gemm1(k, p_g2.wd_loads(0, p_g2.NPRE))
        if cfg.stop != 'g1': p_g2.gemm2(k)
    prof_store(k)
    k(f'{END}:\ns_endpgm\n{NAME}_last:')
    partC = k.L
    st = {}
    A = asmpass.run(partA, stats=st); sa = dict(st)
    AB = asmpass.run(pre + [';@cut'] + partB, stats=st); sb = dict(st)
    B = AB[AB.index(';@cut') + 1:]
    C = asmpass.run(partC, stats=st)
    k.L = A + B + C
    open(path, 'w').write(build([k], single=True))
    print(path, 'lines', len(k.L), sa, sb, st)
if __name__ == '__main__':
    path = sys.argv[1]
    opt = {}
    for a in sys.argv[2:]:
        if '=' in a:
            x, y = a.split('='); opt[x] = int(y) if y.lstrip('-').isdigit() else y
        else: opt[a] = True
    gen(path, **opt)
```

```python
import math
from asmlib import *
T, D, F, N = 2048, 640, 1728, 128
WS_EPOCH = 0x0
WS_STATS = 0x1000
WS_FLAGH = 0x10000
WS_FLAGW = 0x18000
WS_FLAGA = 0x20000
WS_ST2   = 0xA000
WS_HP    = 0x100000
WS_ACT   = 0x400000
HTB, AST = 40960, 55296
WS_WDP   = 0xB00000
WS_WP    = 0xE00000
WS_DBG   = 0x2000000
WS_PROF  = 0xF000000
WS_SIZE  = 0x10000000
S_X, S_ARE, S_AIM, S_BRE, S_BIM, S_CRE, S_CIM, S_LDT = 4, 6, 8, 10, 12, 14, 16, 18
S_DSK, S_BX, S_WG, S_WU, S_WD, S_OUT, S_DBG, S_WS = 20, 22, 24, 26, 28, 30, 32, 34
R_WS, R_X, R_A, R_B, R_OUT = 36, 40, 44, 48, 52
S_TAG, S_WAVE, S_XCD, S_I = 56, 57, 58, 59
S_CG = 60
S_RB, S_C, S_WB = 61, 62, 63
S_TB, S_CB, S_W12, S_WRAP, S_U0 = 4, 5, 6, 7, 24
S_HG, S_AO = 8, 16
VL0, VWA, VFA, VFD = 3, 19, 12, 13
S_PROF = 80
LOG2E = math.log2(math.e)
LDS_TOTAL = 163840
class Cfg:
    prof = False
    warm = 1
    cyc = False
    kx = ''
    noslice = False
    slicelate = False
    abl = ''
    nc1 = 16
    noconvld = False
    cl0 = 64
    nc2 = 8
    nc3 = 0
    hr = 25
    apre = 8
    ar = 45
    nt1 = 6
    verbose = False
    xc = 0
    warmw = 1
    tlb = 0
    stop = None
cfg = Cfg()
def srd(r): return f's[{r}:{r+3}]'
def stamp(k, i):
    if not cfg.prof: return
    k(f'{"s_memtime" if cfg.cyc else "s_memrealtime"} s[96:97]\ns_waitcnt lgkmcnt(0)\ns_mov_b32 s{S_PROF+i}, s96')
def prof_init(k):
    if not cfg.prof: return
    for i in range(16): k(f's_mov_b32 s{S_PROF+i}, 0')
def prof_store(k):
    if not cfg.prof: return
    L = k.lab('pf')
    k(f's_cmp_lg_u32 s{S_WAVE}, 0\ns_cbranch_scc1 {L}')
    k('s_mov_b64 exec, -1\nv_mov_b32 v1, 0')
    for i in range(16): k(f'v_writelane_b32 v1, s{S_PROF+i}, {i}')
    k(f'''v_and_b32 v2, 63, v0
    v_lshlrev_b32 v2, 2, v2
    s_lshl_b32 s96, s2, 6
    s_add_u32 s96, s96, {hex(WS_PROF)}
    v_cmp_gt_u32 vcc, 64, v2
    s_and_saveexec_b64 s[98:99], vcc
    buffer_store_dword v1, v2, {srd(R_WS)}, s96 offen
    s_waitcnt vmcnt(0)
    {L}:''')
def pk(op, d, a, b, c=None, mods=''):
    r = lambda x: x if isinstance(x, str) else f'v[{x}:{x+1}]'
    s = f'v_pk_{op}_f32 {r(d)}, {r(a)}, {r(b)}'
    if c is not None: s += f', {r(c)}'
    return s + (' ' + mods if mods else '')
def cmul(k, z, x, e, t):
    k(pk('mul', t, x + 2, e + 2))
    k(pk('mul', t + 2, x, e + 2))
    k(pk('fma', z, x, e, t, 'neg_lo:[0,0,1] neg_hi:[0,0,1]'))
    k(pk('fma', z + 2, x + 2, e, t + 2))

class Buf:
    def __init__(s): s.L = []
    def __call__(s, t): s.L += [x.strip() for x in t.strip().split('\n') if x.strip()]
def icost(l):
    if l.startswith(';@') or l.endswith(':'): return 0
    op = l.split()[0]
    if op == 's_waitcnt': return 0.5
    if op.startswith(('buffer_', 'global_')): return 2
    if op.startswith('v_permlane') or op in ('v_exp_f32', 'v_rcp_f32', 'v_sqrt_f32', 'v_rsq_f32', 'v_log_f32'): return 2
    return 1
def groups(L):
    G = []; cur = []
    for l in L:
        if G and not cur and (l.startswith(';@maybe_end') or l == 's_mov_b64 exec, -1'): G[-1].append(l); continue
        cur.append(l)
        if not l.startswith(';@') and not l.startswith('s_'): G.append(cur); cur = []
    if cur: G[-1] += cur
    return G
class Stream:
    def __init__(s, n, cap):
        s.n, s.cap = n, cap
        s.vm = [[] for _ in range(n)]; s.ot = [[] for _ in range(n)]; s.used = [0.0] * n
    def put(s, i, g, keep=False):
        isvm = any(l.startswith(('buffer_', 'global_')) for l in g)
        (s.vm if isvm else s.ot)[i].append((g, keep)); s.used[i] += sum(icost(l) for l in g)
    def at(s, L, slots, keep=False):
        it = iter(slots); cur = None
        for g in groups(L):
            if any(l.startswith(('buffer_', 'global_')) for l in g) or cur is None:
                cur = next(it)
                while s.vm[cur]: cur += 1
            s.put(cur, g, keep)
    def spread(s, L, a, b, keep=False):
        G = groups(L)
        free = [max(0.25, s.cap - s.used[i]) for i in range(a, b)]
        C = sum(sum(icost(l) for l in g) for g in G); rho = C / sum(free)
        i = 0; cumf = free[0] * rho; c = 0.0; last = a - 1; lastvm = True
        for g in G:
            w = sum(icost(l) for l in g)
            while c + w / 2 > cumf and i + 1 < len(free): i += 1; cumf += free[i] * rho
            sl = max(a + i, last)
            if any(l.startswith(('buffer_', 'global_')) for l in g):
                if sl == last: sl += 1
                while s.vm[sl]: sl += 1
            s.put(sl, g, keep); last = sl; c += w
        return rho
    def lines(s, i, which, keep_only=False):
        return [l for g, kp in which[i] if kp or not keep_only for l in g]
```

```python
from common import *
from p_pro import ln1
import p_pre
TBL = 33792
CB0, CBS = 112128, 12928
KC0, KC1 = 4608, 4608 + 4160
VX = 208
VG = 224
VPRE = 160
ROWS = {0: [0, 1, 2, 3, 4, 5, 6, 7, 512, 516, 520, 1024, 1032, 1280, 1288, 8],
        1: [256, 256, 258, 260, 260, 260, 262, 264, 768, 772, 776, 1536, 1544, 1792, 1800, 264]}
def rows_of(off):
    return [8 * (r >> 2) + 4 * h + (r & 3) for h in (0, 1) for r in range(16) if ROWS[h][r] == off]
def zipl(*ls):
    out = []
    n = max(len(l) for l in ls)
    for i in range(n):
        for l in ls:
            a, b = i * len(l) // n, (i + 1) * len(l) // n
            out += l[a:b]
    return out
def stats_loads(k):
    for j in range(4):
        k(f'buffer_load_dwordx4 v[{VG+4*j}:{VG+4*j+3}], v{VG+16}, {srd(R_WS)}, s{66+j} offen sc1')
def conv_loads(k):
    k(f'''s_mul_i32 s{S_CG}, s{S_XCD}, 20
    s_mul_i32 s64, s64, 5
    s_mul_i32 s66, s66, 3
    s_add_u32 s{S_CG}, s{S_CG}, s65
    s_add_u32 s64, s64, s66
    s_add_u32 s{S_CG}, s{S_CG}, s64
    s_lshl_b32 s64, s{S_CG}, 3
    s_load_dwordx2 s[70:71], s[{S_LDT}:{S_LDT+1}], s64
    s_load_dwordx2 s[72:73], s[{S_DSK}:{S_DSK+1}], s64
    s_lshl_b32 s65, s{S_CG}, 10
    v_lshl_add_u32 v20, v0, 2, s65''')
    for i, p in enumerate((S_ARE, S_AIM, S_BRE, S_BIM, S_CRE, S_CIM)):
        k(f'global_load_dword v{24+i}, v20, s[{p}:{p+1}]')
    k(f'''s_movk_i32 s65, 2560
    v_mul_lo_u32 v21, v0, s65
    v_add_u32 v21, s64, v21''')
    if not cfg.slicelate: slice_loads(k)
    for j in range(4): k(f's_mov_b32 s{66+j}, {hex(WS_STATS + j*4096)}')
    k(f'v_lshlrev_b32 v{VG+16}, 4, v0')
def slice_loads(k):
    if cfg.noslice: return
    for j in range(4):
        if j: k(f's_mov_b32 s65, {j*512*1280}')
        so = 's65' if j else '0'
        for e in range(2):
            k(f'buffer_load_dwordx2 v[{VX+4*j+2*e}:{VX+4*j+2*e+1}], v21, {srd(R_X)}, {so} offen offset:{e*1280}')
def kgen(k):
    AR, AI, B, C = 32, 34, 36, 40
    E1, E8, E256, E2, E4, CC = 44, 48, 52, 56, 60, 64
    k(f'''s_waitcnt lgkmcnt(0)
    s_lshl_b32 s64, s{S_WAVE}, 4
    s_lshr_b64 s[70:71], s[70:71], s64
    s_lshl_b32 s70, s70, 16
    v_mov_b32 v30, {fl(LOG2E)}
    v_mul_f32 v30, s70, v30
    v_exp_f32 v30, v30
    s_mul_i32 s64, s{S_WAVE}, {TBL}
    v_lshl_add_u32 v22, v1, 3, s64
    v_cvt_pk_bf16_f32 v30, v30, v30
    v_and_b32 v30, 0xffff0000, v30''')
    for i, d in enumerate((AR, AI, B, B + 2, C, C + 2)):
        k(f'v_lshlrev_b32 v{d}, 16, v{24+i}\nv_and_b32 v{d+1}, 0xffff0000, v{24+i}')
    k('v_mov_b32 v31, v30')
    for d in (AR, AI, B, B + 2): k(pk('mul', d, d, 30))
    for d, c in ((AR, LOG2E), (AI, 1 / (2 * math.pi))):
        k(f'v_mul_f32 v{d}, {fl(c)}, v{d}\nv_mul_f32 v{d+1}, {fl(c)}, v{d+1}')
    cmul(k, CC, C, B, 68)
    for E, s in ((E8, 8.0), (E1, 1.0), (E256, 256.0)):
        a = Buf(); b = Buf()
        for m, q in ((0, a), (1, b)):
            t = 72 + 4 * m
            if s == 1.0:
                q(f'v_exp_f32 v{t}, v{AR+m}\nv_fract_f32 v{t+1}, v{AI+m}')
            else:
                q(f'v_mul_f32 v{t}, {fl(s)}, v{AR+m}\nv_mul_f32 v{t+1}, {fl(s)}, v{AI+m}\nv_exp_f32 v{t}, v{t}\nv_fract_f32 v{t+1}, v{t+1}')
            q(f'v_cos_f32 v{t+2}, v{t+1}\nv_sin_f32 v{t+3}, v{t+1}\nv_mul_f32 v{E+m}, v{t}, v{t+2}\nv_mul_f32 v{E+2+m}, v{t}, v{t+3}')
        for l in zipl(a.L, b.L): k(l)
    stamp(k, 6)
    wr = [0]
    def put(q, z, rows, base):
        t = 96 + 2 * (wr[0] % 8); wr[0] += 1
        q(f'v_cvt_pk_bf16_f32 v{t}, v{z}, v{z+1}\nv_cvt_pk_bf16_f32 v{t+1}, v{z+2}, v{z+3}')
        for r in rows: q(f'ds_write_b64 v22, v[{t}:{t+1}] offset:{base + r*528}')
    cq = Buf(); Z = 80
    cq('v_mov_b32 v112, 0x3f803f80\nv_mov_b32 v113, 0\nds_write_b64 v22, v[112:113] offset:16896')
    cq(f'v_mov_b32 v{Z}, v{E8}\nv_mov_b32 v{Z+1}, v{E8+1}\nv_sub_f32 v{Z+2}, 0, v{E8+2}\nv_sub_f32 v{Z+3}, 0, v{E8+3}')
    wr[0] = 0
    def putc(j):
        t = 96 + 2 * (j % 4)
        cq(f'v_cvt_pk_bf16_f32 v{t}, v{Z}, v{Z+1}\nv_cvt_pk_bf16_f32 v{t+1}, v{Z+2}, v{Z+3}\nds_write_b64 v22, v[{t}:{t+1}] offset:{16896 + j*528}')
    putc(1)
    for j in range(2, 32):
        t = 84
        cq(pk('mul', t, Z + 2, E8 + 2)); cq(pk('mul', t + 2, Z, E8 + 2))
        cq(pk('fma', Z, Z, E8, t)); cq(pk('fma', Z + 2, Z + 2, E8, t + 2, 'neg_lo:[0,0,1] neg_hi:[0,0,1]'))
        putc(j)
    rq = Buf(); Y, P = 88, 92; tt = 68
    cnt = [0]
    def putr(z, off):
        t = 104 + 2 * (cnt[0] % 4); cnt[0] += 1
        rq(f'v_cvt_pk_bf16_f32 v{t}, v{z}, v{z+1}\nv_cvt_pk_bf16_f32 v{t+1}, v{z+2}, v{z+3}')
        for r in rows_of(off): rq(f'ds_write_b64 v22, v[{t}:{t+1}] offset:{r*528}')
    putr(CC, 0)
    cmul(rq, Y, CC, E1, tt); putr(Y, 1)
    for o in range(2, 9): cmul(rq, Y, Y, E1, tt); putr(Y, o)
    cmul(rq, E2, E1, E1, tt); cmul(rq, E4, E2, E2, tt)
    cmul(rq, P, CC, E256, tt); putr(P, 256)
    cmul(rq, Y, P, E2, tt); putr(Y, 258)
    for o in (260, 262, 264): cmul(rq, Y, Y, E2, tt); putr(Y, o)
    for base in (512, 768):
        cmul(rq, P, P, E256, tt); putr(P, base)
        cmul(rq, Y, P, E4, tt); putr(Y, base + 4)
        cmul(rq, Y, P, E8, tt); putr(Y, base + 8)
    for base in (1024, 1280, 1536, 1792):
        cmul(rq, P, P, E256, tt); putr(P, base)
        cmul(rq, Y, P, E8, tt); putr(Y, base + 8)
    for l in zipl(cq.L, rq.L):
        if 'w' in cfg.kx and l.startswith('ds_write'): continue
        if 'c' in cfg.kx and l.startswith('v_cvt'): continue
        if 'p' in cfg.kx and l.startswith('v_pk'): continue
        k(l)
    stamp(k, 7)
    stats_loads(k)
    k(f'''v_and_b32 v23, 31, v1
    s_movk_i32 s65, 528
    v_mul_lo_u32 v23, v23, s65
    v_lshrrev_b32 v24, 5, v1
    v_lshl_add_u32 v23, v24, 4, v23
    v_add_u32 v23, s64, v23''')
    ACC = 144
    def rd(ks):
        a = 32 + 8 * (ks % 12)
        k(f'ds_read_b128 v[{a}:{a+3}], v23 offset:{ks*32}\nds_read_b128 v[{a+4}:{a+7}], v23 offset:{16896 + ks*32}')
    for ks in range(6): rd(ks)
    for ks in range(16):
        a = 32 + 8 * (ks % 12)
        c = '0' if ks == 0 else f'v[{ACC}:{ACC+15}]'
        k(f'v_mfma_f32_32x32x16_bf16 v[{ACC}:{ACC+15}], v[{a}:{a+3}], v[{a+4}:{a+7}], {c}')
        if ks + 6 < 16: rd(ks + 6)
def kwrite(k):
    A = 144
    k(f'''s_mul_i32 s74, s{S_WAVE}, {CBS}
    s_add_u32 s74, s74, {CB0}
    v_and_b32 v24, 31, v1
    v_lshrrev_b32 v25, 5, v1
    v_lshlrev_b32 v24, 4, v24
    v_sub_u32 v24, s74, v24
    v_lshlrev_b32 v26, 9, v25
    v_sub_u32 v27, v24, v26
    v_sub_u32 v28, v27, v26
    v_and_b32 v26, 1, v1
    v_cmp_eq_u32 vcc, 1, v26''')
    def cv(d, a, b): k(f'v_cvt_pk_bf16_f32 v{d}, v{a}, v{b}')
    def w(addr, r, off): k(f'ds_write_b128 v{addr}, v[{r}:{r+3}] offset:{off}')
    V = [A + i for i in range(8)] + [A + 15]
    for i in range(4): cv(32 + i, V[7 - 2 * i], V[6 - 2 * i])
    w(27, 32, KC0 + 4080)
    for i in range(4): cv(36 + i, V[8 - 2 * i], V[7 - 2 * i])
    w(27, 36, KC1 + 4080)
    W0, W4, W8 = A + 8, A + 9, A + 10
    cv(40, W8, W8); cv(41, W4, W4); cv(42, W4, W0); cv(43, W0, W0)
    w(27, 40, KC0 + 4080 - 1024)
    k('v_mov_b32 v44, v40'); cv(45, W8, W4); k('v_mov_b32 v46, v41\nv_mov_b32 v47, v43')
    w(27, 44, KC1 + 4080 - 1024)
    for q, (X0, X8) in enumerate(((A + 11, A + 12), (A + 13, A + 14))):
        r = 48 + 12 * q
        k(f'v_cndmask_b32 v{r+8}, v{X0}, v{X8}, vcc')
        cv(r, X8, X8); cv(r + 1, X8, r + 8); cv(r + 2, X0, X0); k(f'v_mov_b32 v{r+3}, v{r+2}')
        w(28, r, KC0 + 4080 - 2048 - 512 * q)
        k(f'v_mov_b32 v{r+4}, v{r}\nv_mov_b32 v{r+5}, v{r}'); cv(r + 6, r + 8, X0); k(f'v_mov_b32 v{r+7}, v{r+2}')
        w(28, r + 4, KC1 + 4080 - 2048 - 512 * q)
    k(f'''v_mov_b32 v72, 0
    v_mov_b32 v73, 0
    v_lshl_add_u32 v74, v1, 3, s74
    ds_write_b64 v74, v[72:73]
    v_cvt_pk_bf16_f32 v75, v{A}, v72
    v_cmp_eq_u32 vcc, 0, v1
    v_lshl_add_u32 v74, v1, 2, s74
    v_cndmask_b32 v75, v72, v75, vcc
    s_mov_b64 exec, 0xffff
    ds_write_b32 v74, v72 offset:{KC0 + 4096}
    ds_write_b32 v74, v75 offset:{KC1 + 4096}
    s_mov_b64 exec, -1''')
def uprep(k):
    n = k.lab('st')
    k(f's_mov_b32 s75, 0\n{n}:')
    k(f'v_cmp_ne_u32 vcc, s{S_TAG}, v{VG+1}')
    for r in (3, 5, 7, 9, 11, 13, 15):
        k(f'v_cmp_ne_u32 s[76:77], s{S_TAG}, v{VG+r}\ns_or_b64 vcc, vcc, s[76:77]')
    k(f'''s_cbranch_vccz {n}_ok
    s_add_u32 s75, s75, 1
    s_cmp_gt_u32 s75, 0x40000
    s_cbranch_scc1 {n}_ok''')
    stats_loads(k)
    k(f's_waitcnt vmcnt(0)\ns_branch {n}\n{n}_ok:')
    stamp(k, 9)
    k(f'''s_lshl_b32 s76, s72, 16
    s_and_b32 s78, s72, 0xffff0000
    s_mov_b32 s77, s76
    s_mov_b32 s79, s78
    s_lshl_b32 s70, s73, 16
    s_and_b32 s72, s73, 0xffff0000
    s_mov_b32 s71, s70
    s_mov_b32 s73, s72
    v_lshlrev_b32 v24, 2, v0
    v_add_u32 v24, {CB0 + 512}, v24''')
    DS = ['s[76:77]', 's[78:79]', 's[70:71]', 's[72:73]']
    for j in range(4):
        g = VG + 4 * j; M, RC = 32 + 4 * (j & 1), 34 + 4 * (j & 1)
        k(f'''v_and_b32 v{RC}, 0xffff0000, v{g}
        v_and_b32 v{RC+1}, 0xffff0000, v{g+2}
        v_rcp_f32 v{RC}, v{RC}
        v_rcp_f32 v{RC+1}, v{RC+1}
        v_lshlrev_b32 v{M}, 16, v{g}
        v_lshlrev_b32 v{M+1}, 16, v{g+2}''')
        for c in range(4):
            xs = VPRE + 8 * j + 2 * c; t = 40 + 2 * c + 8 * (j & 1)
            for e in range(2):
                src = VX + 4 * j + 2 * e + (c >> 1)
                k(f'v_and_b32 v{xs+e}, 0xffff0000, v{src}' if c & 1 else f'v_lshlrev_b32 v{xs+e}, 16, v{src}')
            k(pk('add', t, xs, M, None, 'neg_lo:[0,1] neg_hi:[0,1]'))
            k(pk('mul', t, t, RC))
            k(f'v_cvt_pk_bf16_f32 v{56+c+4*(j&1)}, v{t}, v{t+1}')
            k(pk('fma', xs, t, DS[c], xs))
            k(f'ds_write_b32 v24, v{56+c+4*(j&1)} offset:{c*CBS + j*1024}')
def conv(k):
    NA = 24
    k(f'''v_and_b32 v24, 15, v1
    v_lshrrev_b32 v25, 4, v1
    v_lshlrev_b32 v26, 5, v24
    v_lshl_add_u32 v26, v25, 4, v26
    v_add_u32 v26, s74, v26
    v_lshlrev_b32 v27, 3, v25
    v_sub_u32 v27, v27, v24
    v_add_u32 v27, 2031, v27
    v_and_b32 v28, 1, v27
    s_movk_i32 s65, {4160 + 2}
    v_mul_lo_u32 v28, v28, s65
    v_lshl_add_u32 v27, v27, 1, v28
    v_add_u32 v27, s74, v27''')
    for i in range(4): k(f'v_add_u32 v{28+i}, {KC0 - 1024*(i+1) + 64}, v27')
    def rdA(e):
        r = 32 + 4 * (e % NA); i = e // 16; o = (15 - e % 16) * 16
        return [f'ds_read2_b32 v[{r}:{r+1}], v{28+i} offset0:{o} offset1:{o+1}', f'ds_read2_b32 v[{r+2}:{r+3}], v{28+i} offset0:{o+2} offset1:{o+3}']
    def rdB(q): return [f'ds_read_b128 a[{4*(q+7)}:{4*(q+7)+3}], v26 offset:{2*(240+32*q)}']
    mf = []
    for e in range(64):
        for b in range(8):
            if e <= 8 * b + 7: mf.append((e, b))
    loads = []; seenA = set(); seenB = set()
    for idx, (e, b) in enumerate(mf):
        if e not in seenA: seenA.add(e); loads += [(l, ('A', e)) for l in rdA(e)]
        q = 8 * b - e
        if q not in seenB: seenB.add(q); loads += [(l, ('B', q)) for l in rdB(q)]
    lastuse = {}
    for idx, (e, b) in enumerate(mf): lastuse[e] = idx
    li = 0
    def can(idx):
        l, (t, v) = loads[li]
        return t == 'B' or v < NA or lastuse[v - NA] < idx
    for _ in range(12): k(loads[li][0]); li += 1
    ex = []
    dg = [g for R in range(6) for g in groups(p_pre.dma_round(R))]
    wl = p_pre.wd_loads(0, cfg.nc1); wg = []
    for l in wl:
        if l.startswith('buffer'): wg.append([l])
        else: wg[-1].append(l)
    ex = zipl([('d', g) for g in dg], [('w', g) for g in wg]) if not cfg.noconvld else []
    odd = list(range(cfg.cl0 | 1, 286, 2)); exs = {}
    nw = 0
    for n, (t, g) in enumerate(ex):
        sl = odd[n * len(odd) // len(ex)]; exs[sl] = g
        if t == 'w':
            assert mf[sl][0] > nw, (sl, nw); nw += 1
    started = set()
    for idx, (e, b) in enumerate(mf):
        r = 32 + 4 * (e % NA); q = 8 * b - e; acc = 128 + 4 * b
        c = f'v[{acc}:{acc+3}]' if b in started else '0'
        started.add(b)
        k(f'v_mfma_f32_16x16x32_bf16 v[{acc}:{acc+3}], v[{r}:{r+3}], a[{4*(q+7)}:{4*(q+7)+3}], {c}')
        for l in exs.get(idx, []): k(l)
        nl = 1 if (idx % 8) else 2
        if idx >= 64: nl = 1 if idx % 2 == 0 else 0
        if idx < 64 and idx % 4 == 0: nl = 2
        for _ in range(nl):
            if li < len(loads) and can(idx + 1): k(loads[li][0]); li += 1
    assert li == len(loads), (li, len(loads))
    if cfg.noconvld:
        for R in range(6):
            for l in p_pre.dma_round(R): k(l)
        for l in wl: k(l)
    for l in p_pre.wd_loads(cfg.nc1, cfg.nc1 + cfg.nc2): k(l)
def conv_out(k):
    k(f'''v_and_b32 v24, 15, v1
    v_lshrrev_b32 v25, 4, v1
    s_movk_i32 s65, 80
    v_mul_lo_u32 v24, v24, s65
    v_lshl_add_u32 v24, v25, 4, v24
    v_add_u32 v24, s74, v24
    v_lshrrev_b32 v25, 3, v0
    v_mul_lo_u32 v25, v25, s65
    v_and_b32 v26, 7, v0
    v_lshl_add_u32 v25, v26, 3, v25
    v_add_u32 v25, {CB0}, v25''')
    for b in range(8): k(f'ds_write_b128 v24, v[{128+4*b}:{131+4*b}] offset:{b*1280}')
    k(f'''s_lshl_b32 s64, s{S_CG}, 8
    s_add_u32 s64, s64, {hex(WS_HP)}
    v_lshrrev_b32 v26, 4, v0
    v_mul_u32_u24 v26, {HTB}, v26
    v_and_b32 v27, 15, v0
    v_lshl_add_u32 v26, v27, 4, v26
    s_waitcnt lgkmcnt(0)
    s_barrier''')
    for j in range(4):
        for c in range(4): k(f'ds_read_b64 v[{32+8*j+2*c}:{33+8*j+2*c}], v25 offset:{c*CBS + j*2560}')
    for j in range(4):
        for c in range(4): k(pk('add', 32 + 8 * j + 2 * c, 32 + 8 * j + 2 * c, VPRE + 8 * j + 2 * c))
        o = 64 + 4 * j; y = 32 + 8 * j
        for e in range(2):
            k(f'v_cvt_pk_bf16_f32 v{o+2*e}, v{y+e}, v{y+2+e}\nv_cvt_pk_bf16_f32 v{o+2*e+1}, v{y+4+e}, v{y+6+e}')
        k(f'buffer_store_dwordx4 v[{o}:{o+3}], v26, {srd(R_WS)}, s64 offen sc1')
        if j < 3: k(f's_add_u32 s64, s64, {16*HTB}')
def publish(k, soff_expr_lines, sreg, wave=0):
    L = k.lab('pub')
    k(soff_expr_lines)
    k(f'''s_waitcnt vmcnt(0)
    s_barrier
    s_cmp_lg_u32 s{S_WAVE}, {wave}
    s_cbranch_scc1 {L}
    v_mov_b32 v2, s{S_TAG}
    s_mov_b64 exec, 1
    ;@maybe_begin
    buffer_store_dword v2, off, {srd(R_WS)}, s{sreg} sc1
    ;@maybe_end
    s_mov_b64 exec, -1
    {L}:''')
def conv_wg(k):
    conv_loads(k)
    ln1(k)
    if cfg.slicelate: slice_loads(k)
    stamp(k, 1)
    kgen(k)
    k('s_barrier')
    stamp(k, 2)
    p_pre.ids(k)
    p_pre.flag_load(k, 's25')
    kwrite(k)
    stamp(k, 8)
    uprep(k)
    k('s_waitcnt lgkmcnt(0)\ns_barrier')
    stamp(k, 3)
    L = k.lab('ep')
    k(f'''s_or_b32 s64, s2, s{S_WAVE}
    s_cbranch_scc1 {L}
    v_mov_b32 v2, s{S_TAG}
    s_mov_b64 exec, 1
    ;@maybe_begin
    buffer_store_dword v2, off, {srd(R_WS)}, 0 sc1
    ;@maybe_end
    s_mov_b64 exec, -1
    {L}:''')
    p_pre.flag_wait(k, 's25')
    conv(k)
    stamp(k, 4)
    conv_out(k)
    publish(k, f's_lshl_b32 s64, s{S_CG}, 7\ns_add_u32 s64, s64, {hex(WS_FLAGH)}', 64)
    stamp(k, 5)
```

```python
from common import *
from p_conv import publish
import p_pre
from p_pre import dma_round
RING = 144
SCR = RING * 1024
VH = 96
ACC = 32
VL1, VL2, VL4 = 4, 5, 7
VST, VK1, VK3, VD2, VBM = 8, 9, 10, 11, 12
VGR = 16
VS2 = 80
NA = 8
def rdA(seq, f):
    s = f % RING; r = 4 * (seq % NA)
    return f'ds_read_b128 a[{r}:{r+3}], v{(VL0, VL1, VL2)[s // 64]} offset:{(s % 64)*1024}'
def epi(u):
    A = ACC + 16 * (u % 4); q = Buf()
    for g in range(2):
        t = 20 + 4 * g; E = range(4 * g, 4 * g + 4)
        for j in E: q(f'v_mul_f32 v{t+j%4}, v{A+j}, v{A+j}')
        for j in E: q(f'v_fma_f32 v{t+j%4}, v{t+j%4}, v{VK3}, v{VK1}')
        for j in E: q(f'v_mul_f32 v{t+j%4}, v{A+j}, v{t+j%4}')
        for j in E: q(f'v_exp_f32 v{t+j%4}, v{t+j%4}\nv_mul_f32 v{A+8+j}, v{A+j}, v{A+8+j}')
        for j in E: q(f'v_fma_f32 v{t+j%4}, v{t+j%4}, v{VD2}, v{VD2}')
        for j in E: q(f'v_rcp_f32 v{t+j%4}, v{t+j%4}')
        for j in E: q(f'v_mul_f32 v{A+8+j}, v{A+8+j}, v{t+j%4}')
        for j in range(2 * g, 2 * g + 2): q(f'v_cvt_pk_bf16_f32 v{A+j}, v{A+8+2*j}, v{A+9+2*j}')
    q(f'buffer_store_dwordx4 v[{A}:{A+3}], v{VST}, {srd(R_WS)}, s68 offen offset:{u*512} sc1')
    return q.L
def s2_dots():
    q = Buf()
    for j in range(3):
        for r in range(2):
            for e in range(2):
                x = VS2 + 4 * j + 2 * e + r; first = (j == 0 and r == 0)
                q(f'v_dot2_f32_bf16 v{20+2*e}, v{x}, s70, ' + ('0' if first else f'v{20+2*e}'))
                q(f'v_dot2_f32_bf16 v{21+2*e}, v{x}, v{x}, ' + ('0' if first else f'v{21+2*e}'))
    return q.L
def s2_red():
    q = Buf()
    q('''v_permlane16_swap_b32 v20, v21
    v_permlane16_swap_b32 v22, v23
    v_add_f32 v20, v20, v21
    v_add_f32 v22, v22, v23
    v_permlane32_swap_b32 v20, v22
    v_add_f32 v20, v20, v22
    v_add_f32 v20, v20, v20 row_ror:4
    v_add_f32 v20, v20, v20 row_ror:8
    ;@tag s2w
    ds_write_b32 v6, v20''')
    return q.L
def s2_fin():
    q = Buf()
    q(f'''ds_read2_b64 v[20:23], v28 offset0:0 offset1:8
    ds_read2_b64 v[24:27], v28 offset0:16 offset1:24
    v_add_f32 v20, v20, v22
    v_add_f32 v21, v21, v23
    v_add_f32 v24, v24, v26
    v_add_f32 v25, v25, v27
    v_add_f32 v20, v20, v24
    v_add_f32 v21, v21, v25
    v_mul_f32 v20, {fl(1/D)}, v20
    v_mul_f32 v21, {fl(1/D)}, v21
    v_fma_f32 v21, -v20, v20, v21
    v_max_f32 v21, 0, v21
    v_cvt_pk_bf16_f32 v21, v21, v21
    v_and_b32 v21, 0xffff0000, v21
    v_add_f32 v21, {fl(1e-5)}, v21
    v_cvt_pk_bf16_f32 v21, v21, v21
    v_and_b32 v21, 0xffff0000, v21
    v_sqrt_f32 v21, v21
    v_mov_b32 v23, s{S_TAG}
    v_cvt_pk_bf16_f32 v22, v20, v21
    s_mov_b64 exec, s[72:73]
    ;@maybe_begin
    buffer_store_dwordx2 v[22:23], v29, {srd(R_WS)}, s71 offen sc1
    ;@maybe_end
    s_mov_b64 exec, -1''')
    return q.L
def gr_load(): return [f'buffer_load_dwordx2 v[{VGR}:{VGR+1}], v18, {srd(R_WS)}, s69 offen sc1']
def gr_wait(k):
    L = k.lab('gr'); q = Buf()
    q(f'''v_cmp_ne_u32 vcc, s{S_TAG}, v{VGR+1}
    s_mov_b32 s65, 0
    s_cbranch_vccz {L}_ok
    ;@push
    {L}:
    {gr_load()[0]}
    s_add_u32 s65, s65, 1
    s_waitcnt vmcnt(0)
    v_cmp_ne_u32 vcc, s{S_TAG}, v{VGR+1}
    s_cmp_gt_u32 s65, 0x40000
    s_cbranch_scc1 {L}_ok
    s_cbranch_vccnz {L}
    ;@pop
    {L}_ok:
    v_and_b32 v{VBM+1}, 0xffff, v{VGR}
    v_xor_b32 v{VBM+1}, 0x8000, v{VBM+1}
    v_lshl_or_b32 v{VBM}, v{VBM+1}, 16, v{VBM+1}''')
    return q.L
def gr_const():
    q = Buf(); c = 2 * LOG2E * math.sqrt(2 / math.pi)
    q(f'''v_and_b32 v{VD2}, 0xffff0000, v{VGR}
    v_rcp_f32 v{VK3}, v{VD2}
    v_mul_f32 v{VD2}, v{VD2}, v{VD2}
    v_mul_f32 v{VK1}, {fl(-c)}, v{VK3}
    v_mul_f32 v{VK3}, v{VK3}, v{VK3}
    v_mul_f32 v{VK3}, {fl(0.044715)}, v{VK3}
    v_mul_f32 v{VK3}, v{VK3}, v{VK1}''')
    return q.L
def hload(j):
    g, r = divmod(j, 5)
    return f'buffer_load_dwordx4 v[{VH+4*j}:{VH+4*j+3}], v{VL0 if r < 4 else VL4}, {srd(R_WS)}, s{S_HG+g} offen offset:{(r%4)*1024} sc1'
def gemm1(k):
    for R in range(6, 9):
        for l in dma_round(R): k(l)
    q0 = cfg.nc1 + cfg.nc2
    for l in p_pre.wd_loads(q0, q0 + cfg.nc3): k(l)
    q0 += cfg.nc3
    k(f'''v_min_u32 v30, 39, v1
    s_mul_i32 s25, s{S_WAVE}, {40*128}
    v_lshlrev_b32 v30, 7, v30
    s_add_u32 s25, s25, {hex(WS_FLAGH)}''')
    p_pre.flag_load(k, 's25', 30, 31)
    k(f'''v_add_u32 v{VL1}, 0x10000, v{VL0}
    v_add_u32 v{VL2}, 0x20000, v{VL0}
    v_add_u32 v{VL4}, 0x1000, v{VL0}
    v_and_b32 v6, 15, v1
    v_bfe_u32 v2, v1, 4, 1
    v_lshl_add_u32 v2, v6, 1, v2
    v_lshlrev_b32 v18, 3, v2
    v_lshrrev_b32 v{VST}, 4, v2
    v_mul_u32_u24 v{VST}, {AST}, v{VST}
    v_and_b32 v2, 15, v2
    v_lshl_add_u32 v{VST}, v2, 5, v{VST}
    v_lshrrev_b32 v2, 5, v1
    v_lshl_add_u32 v{VST}, v2, 4, v{VST}
    v_lshrrev_b32 v6, 2, v1
    v_and_b32 v2, 3, v1
    v_lshlrev_b32 v26, 8, v6
    v_lshl_add_u32 v26, v2, 4, v26
    v_mov_b32 v27, 0x10000000
    v_cmp_gt_u32 vcc, 8, v6
    v_cndmask_b32 v27, v27, v26, vcc
    v_mov_b32 v{VBM+2}, 0
    v_mov_b32 v{VBM+3}, 0
    v_and_b32 v29, 7, v1
    v_lshlrev_b32 v29, 3, v29
    v_add_u32 v28, {SCR}, v29
    s_lshl_b32 s64, s{S_WAVE}, 6
    s_add_u32 s64, s64, {SCR}
    v_lshl_add_u32 v6, v2, 4, s64
    v_lshrrev_b32 v2, 4, v1
    v_lshl_add_u32 v6, v2, 2, v6
    s_lshl_b32 s64, s{S_RB}, 3
    s_lshl_b32 s65, s{S_WAVE}, 1
    s_add_u32 s64, s64, s65
    s_mul_i32 s68, s64, {AST}
    s_lshl_b32 s65, s{S_U0}, 9
    s_add_u32 s68, s68, s65
    s_add_u32 s68, s68, {hex(WS_ACT)}
    s_lshl_b32 s64, s{S_RB}, 10
    s_lshl_b32 s65, s{S_WAVE}, 8
    s_add_u32 s69, s64, s65
    s_add_u32 s69, s69, {hex(WS_ST2)}
    s_lshl_b32 s65, s{S_C}, 6
    s_add_u32 s71, s64, s65
    s_add_u32 s71, s71, {hex(WS_ST2)}
    s_lshl_b32 s64, s{S_RB}, 2
    s_lshr_b32 s65, s{S_C}, 2
    s_add_u32 s65, s65, s64
    s_mul_i32 s75, s65, {HTB}
    s_and_b32 s65, s{S_C}, 3
    s_lshl_b32 s65, s65, 6
    s_add_u32 s75, s75, s65
    s_mul_i32 s65, s{S_WAVE}, {40*256}
    s_add_u32 s75, s75, s65
    s_add_u32 s75, s75, {hex(WS_HP)}
    s_add_u32 s76, s75, 4096
    s_add_u32 s77, s75, 8192
    s_add_u32 s64, s64, s{S_WAVE}
    s_mul_i32 s64, s64, {HTB}
    s_add_u32 s64, s64, {hex(WS_HP)}
    s_cmp_eq_u32 s{S_WAVE}, 0
    s_cselect_b32 s72, 0xff, 0
    s_mov_b32 s73, 0
    s_mov_b32 s70, 0x3f803f80''')
    for g in range(8):
        k(f's_add_u32 s65, s{S_C}, {g}\ns_and_b32 s65, s65, 7\ns_mul_i32 s65, s65, 5120\ns_add_u32 s{S_HG+g}, s65, s64')
    stamp(k, 10)
    p_pre.flag_wait(k, 's25', 30, 31)
    k('s_waitcnt vmcnt(0)\ns_barrier')
    stamp(k, 11)
    s2l = [f'buffer_load_dwordx4 v[{VS2+4*j}:{VS2+4*j+3}], v{27 if j == 2 else 26}, {srd(R_WS)}, s{75+j} offen sc1' for j in range(3)]
    for l in [hload(0), hload(1)] + s2l + [hload(2), hload(3), hload(4)]: k(l)
    X = cfg.xc
    seq = [(u, ks) for ks in range(40) for u in range(3)]
    seq += [(3, ks) for ks in range(X)] + [(u, 40) for u in range(3)] + [(3, ks) for ks in range(X, 41)]
    seq += [(u, ks) for u in range(4, 7) for ks in range(41)]
    n = len(seq); DIST = 6
    S = Stream(n + 4, 4.0)
    pre = [[] for _ in range(n)]
    def swaps(ks):
        b = VH + 4 * ks
        return [f'v_permlane16_swap_b32 v{b}, v{b+2}', f'v_permlane16_swap_b32 v{b+1}, v{b+3}']
    for ks in range(1, 40): S.put(3 * ks - 2, swaps(ks))
    hs = [min((j - 5) * cfg.hr // 10, 3 * j - 15) for j in range(5, 40)]
    S.at([hload(j) for j in range(5, 40)], hs)
    hend = max(i for i in range(n) if S.vm[i])
    def bar(i, wait=None, lg=None):
        S.put(i, ([f';@waitvm r{wait}'] if wait is not None else []) + ([f';@waitlg {lg}'] if lg else []) + ['s_barrier'])
    S.put(5, s2_dots())
    S.spread(s2_red(), 6, 11)
    bar(11, lg='s2w')
    fin = s2_fin()
    S.put(12, fin[:2])
    S.spread(fin[2:], 14, 30)
    S.at(gr_load(), [hend + 1])
    pre[120 + X] += gr_wait(k)
    S.spread(gr_const(), 120 + X, 123 + X)
    def rounds(Rs, a, b):
        L = [l for R in Rs for l in dma_round(R)]; m = 4 * len(Rs)
        S.at(L, [a + i * (b - a) // m for i in range(m)])
    bar(95); rounds([9, 10, 12, 15], 96, 136)
    bar(136, 10); rounds([11, 13, 14], 137, 167)
    bar(168, 11); rounds([16, 17], 169, 189)
    bar(200, 14)
    bar(248, 17)
    m = p_pre.NPRE - q0
    if m: S.at(p_pre.wd_loads(q0, p_pre.NPRE), [190 + i * (284 - 190) // m for i in range(m)], keep=True)
    lo = [124 + X, 124 + X, 124 + X, 166, 207, 248]; hi = [163, 204, 245, n, n, n]
    free = lambda a, b: sum(max(0.25, S.cap - S.used[i]) for i in range(a, b))
    a = lo[0]
    for u in range(6):
        a = max(a, lo[u]); tot = free(a, n) / (6 - u); b = a + 1
        while b < hi[u] and free(a, b) < tot: b += 1
        rho = S.spread(epi(u), a, b, keep=True)
        if cfg.verbose: print('epi', u, a, b, round(rho, 2))
        a = b
    for i in range(DIST): k(rdA(i, seq[i][0] * 41 + seq[i][1]))
    for l in swaps(0): k(l)
    L6, LJ = k.lab('u6'), k.lab('uj')
    tail = p_pre.wd_loads(p_pre.NPRE, p_pre.NPRE + cfg.nt1)
    for i, (u, ks) in enumerate(seq):
        if i == 246:
            k(f's_and_b32 s64, s{S_C}, 3\ns_cmp_eq_u32 s64, 3\ns_cbranch_scc1 {L6}\n;@push')
        for l in pre[i]: k(l)
        a = 4 * (i % NA); acc = ACC + 16 * (u % 4)
        b = f'v[{VH+4*ks}:{VH+4*ks+3}]' if ks < 40 else f'v[{VBM}:{VBM+3}]'
        k(f'v_mfma_f32_32x32x16_bf16 v[{acc}:{acc+15}], a[{a}:{a+3}], {b}, ' + ('0' if ks == 0 else f'v[{acc}:{acc+15}]'))
        for l in S.lines(i, S.vm): k(l)
        if i + DIST < n: k(rdA(i + DIST, seq[i + DIST][0] * 41 + seq[i + DIST][1]))
        for l in S.lines(i, S.ot): k(l)
        if i == 119: stamp(k, 12)
    for i in range(n, n + 4):
        for l in S.lines(i, S.vm) + S.lines(i, S.ot): k(l)
    for l in tail + epi(6): k(l)
    k(f's_branch {LJ}\n;@pop\n{L6}:')
    for i in range(246, n + 4):
        for l in S.lines(i, S.vm, True) + S.lines(i, S.ot, True): k(l)
    for l in tail: k(l)
    k(f'{LJ}:\ns_waitcnt lgkmcnt(0)')
    stamp(k, 13)
    publish(k, f's_lshl_b32 s64, s{S_RB}, 11\ns_lshl_b32 s65, s{S_C}, 7\ns_add_u32 s64, s64, s65\ns_add_u32 s64, s64, {hex(WS_FLAGA)}', 64, wave=3)
    k(';@forget')
    stamp(k, 14)
```

```python
from common import *
import p_pre
from p_pre import wreg, NPRE
ACC2 = 32
VRES = 152
VFIN = 168
RB0 = 200
PITCH = 336; WREG = 16 * PITCH; BREG = 4 * WREG
def gemm2(k):
    for l in p_pre.wd_loads(NPRE + cfg.nt1, 70): k(l)
    k(f'''v_min_u32 v11, 39, v1
    v_mul_u32_u24 v12, 205, v11
    v_lshrrev_b32 v12, 11, v12
    v_mul_u32_u24 v13, 10, v12
    v_sub_u32 v13, v11, v13
    s_lshl_b32 s64, s{S_WAVE}, 2
    v_add_u32 v12, s64, v12
    v_lshlrev_b32 v14, 9, v13
    v_lshl_add_u32 v14, v12, 3, v14
    s_mul_i32 s66, s{S_CB}, {20*256}
    s_add_u32 s66, s66, {hex(WS_HP)}''')
    for b in range(4):
        k(f'''s_add_u32 s64, s{S_CB}, {b}
        s_and_b32 s64, s64, 3
        s_lshl_b32 s65, s{S_TB}, 2
        s_add_u32 s{74+b}, s64, s65
        s_lshr_b32 s65, s{74+b}, 1
        s_mul_i32 s65, s65, {HTB}
        s_and_b32 s64, s64, 1
        s_lshl_b32 s64, s64, 7
        s_add_u32 s65, s65, s64
        s_add_u32 s65, s65, s66''')
        for e in range(2):
            k(f'buffer_load_dwordx2 v[{VRES+4*b+2*e}:{VRES+4*b+2*e+1}], v14, {srd(R_WS)}, s65 offen offset:{e*256} sc1')
    k(f'''s_lshl_b32 s64, s{S_WAVE}, 2
    v_min_u32 v30, 4, v1
    v_add_u32 v30, s64, v30
    v_min_u32 v30, 15, v30
    v_lshlrev_b32 v30, 7, v30
    s_lshr_b32 s25, s{S_TB}, 1
    s_lshl_b32 s25, s25, 11
    s_add_u32 s25, s25, {hex(WS_FLAGA)}''')
    p_pre.flag_load(k, 's25', 30, 31)
    k(f'''s_movk_i32 s65, {PITCH}
    v_mul_lo_u32 v11, v12, s65
    v_lshl_add_u32 v11, v13, 5, v11
    s_movk_i32 s64, 1280
    v_mul_lo_u32 v12, v12, s64
    v_lshl_add_u32 v12, v13, 4, v12
    v_and_b32 v6, 15, v1
    v_lshrrev_b32 v7, 4, v1
    v_mul_lo_u32 v10, v6, s65
    v_lshl_add_u32 v10, v7, 4, v10
    s_mul_i32 s64, s{S_WAVE}, {WREG}
    v_add_u32 v10, s64, v10
    v_and_b32 v8, 1, v7
    v_lshrrev_b32 v9, 5, v1
    v_lshlrev_b32 v9, 9, v9
    v_lshl_add_u32 v9, v8, 4, v9
    v_lshl_add_u32 v9, v6, 5, v9
    v_add_u32 v15, 0x1000, v9
    s_lshr_b32 s66, s{S_CB}, 2
    s_cmp_eq_u32 s{S_WAVE}, 3
    s_cselect_b32 s64, 0x40000000, 0
    s_cmp_eq_u32 s66, 1
    s_cselect_b32 s65, s64, 0
    s_cselect_b32 s64, 0, s64
    v_add_u32 v16, s65, v15
    v_add_u32 v17, s64, v15
    s_mul_i32 s67, s{S_WAVE}, 14
    s_mul_i32 s64, s66, 7
    s_xor_b32 s66, s66, 1
    s_mul_i32 s66, s66, 7
    s_add_u32 s64, s64, s67
    s_add_u32 s66, s66, s67
    s_lshl_b32 s64, s64, 10
    s_lshl_b32 s66, s66, 10
    s_mul_i32 s70, s{S_CB}, 160
    s_mov_b32 s72, -1
    s_movk_i32 s73, 0xff''')
    for b in range(4):
        k(f'''s_mul_i32 s65, s{74+b}, {AST}
        s_add_u32 s{S_AO+2*b}, s65, s64
        s_add_u32 s{S_AO+2*b+1}, s65, s66
        s_mul_i32 s{74+b}, s{74+b}, {16*1280}
        s_add_u32 s{74+b}, s{74+b}, s70''')
    p_pre.flag_wait(k, 's25', 30, 31)
    stamp(k, 15)
    def rb(i): r = RB0 + 4 * (i % 14); return f'v[{r}:{r+3}]'
    def ld(i):
        b, kk = divmod(i, 14); h, r = divmod(kk, 7)
        va = 9 if r < 4 else 15 if r == 4 else 16 + h
        return f'buffer_load_dwordx4 {rb(i)}, v{va}, {srd(R_B)}, s{S_AO+2*b+h} offen offset:{(r%4)*1024} sc1'
    P = cfg.apre
    for i in range(P): k(ld(i))
    def wr(b):
        A = ACC2 + 20 * (b & 1)
        return [x for j in range(5) for x in (f';@tag pw{b}', f'ds_write_b128 v10, v[{A+4*j}:{A+4*j+3}] offset:{(b%3)*BREG + j*64}')]
    def fin(b):
        q = Buf(); F = VFIN
        for w in range(4):
            for e in range(2): q(f'ds_read_b128 v[{F+8*w+4*e}:{F+8*w+4*e+3}], v11 offset:{(b%3)*BREG + w*WREG + e*16}')
        for r in range(8): q(f'v_add_f32 v{F+r}, v{F+r}, v{F+8+r}')
        for r in range(8): q(f'v_add_f32 v{F+16+r}, v{F+16+r}, v{F+24+r}')
        for r in range(8):
            x = VRES + 4 * b + r // 2
            q(f'v_and_b32 v{F+8+r}, 0xffff0000, v{x}' if r & 1 else f'v_lshlrev_b32 v{F+8+r}, 16, v{x}')
        for r in range(8): q(f'v_add_f32 v{F+r}, v{F+r}, v{F+16+r}')
        for r in range(8): q(f'v_add_f32 v{F+r}, v{F+r}, v{F+8+r}')
        for r in range(4): q(f'v_cvt_pk_bf16_f32 v{F+24+r}, v{F+2*r}, v{F+2*r+1}')
        q(f'''s_mov_b64 exec, s[72:73]
        buffer_store_dwordx4 v[{F+24}:{F+27}], v12, {srd(R_OUT)}, s{74+b} offen
        s_mov_b64 exec, -1''')
        return q.L
    n = 280
    S = Stream(n + 4, 1.5)
    S.at([ld(i) for i in range(P, 56)], [max((i - P) * cfg.ar // 10, 5 * (i - 14) + 5) for i in range(P, 56)])
    for b in range(3):
        s = 70 * (b + 1)
        S.spread(wr(b), s + 2, s + 12)
        S.put(s + 16, [f';@waitlg pw{b}', 's_barrier'])
        S.spread(fin(b), s + 17, s + 68)
    for i in range(n):
        fr, j = divmod(i, 5); b, kk = divmod(fr, 14); A = ACC2 + 20 * (b & 1) + 4 * j
        k(f'v_mfma_f32_16x16x32_bf16 v[{A}:{A+3}], {wreg(kk*5+j)}, {rb(fr)}, ' + ('0' if kk == 0 else f'v[{A}:{A+3}]'))
        for l in S.lines(i, S.vm) + S.lines(i, S.ot): k(l)
    for i in range(n, n + 4):
        for l in S.lines(i, S.vm) + S.lines(i, S.ot): k(l)
    for l in wr(3): k(l)
    k('s_waitcnt lgkmcnt(0)\ns_barrier')
    for l in fin(3): k(l)
    if cfg.prof:
        k('s_waitcnt vmcnt(0)'); stamp(k, 9)
```

```python
from common import *
NPRE = 56
WT = 96
def wreg(q): return f'a[{252-4*q}:{255-4*q}]' if q < NPRE else f'v[{WT+4*(q-NPRE)}:{WT+3+4*(q-NPRE)}]'
def ids(k):
    k(f'''s_lshr_b32 s64, s{S_XCD}, 1
    s_lshl_b32 s64, s64, 2
    s_and_b32 s65, s{S_I}, 3
    s_add_u32 s{S_RB}, s64, s65
    s_lshl_b32 s{S_TB}, s{S_XCD}, 2
    s_add_u32 s{S_TB}, s{S_TB}, s65
    s_and_b32 s64, s{S_XCD}, 1
    s_lshl_b32 s64, s64, 3
    s_lshr_b32 s{S_CB}, s{S_I}, 2
    s_add_u32 s{S_C}, s64, s{S_CB}
    s_mul_i32 s64, s{S_C}, 7
    s_lshr_b32 s65, s{S_C}, 2
    s_sub_u32 s{S_U0}, s64, s65
    s_mul_i32 s{S_WB}, s{S_U0}, {41*1024}
    s_lshl_b32 s{S_W12}, s{S_WAVE}, 12
    s_add_u32 s{S_WB}, s{S_WB}, s{S_W12}
    s_add_u32 s{S_WB}, s{S_WB}, {hex(WS_WP)}
    s_lshr_b32 s64, s{S_CB}, 2
    s_mul_i32 s{S_WRAP}, s64, {hex((-14*40960) & 0xffffffff)}
    s_add_u32 s{S_WRAP}, s{S_WRAP}, 40960
    s_mul_i32 s64, s64, 7
    s_mul_i32 s65, s{S_WAVE}, 14
    s_add_u32 s64, s64, s65
    s_mul_i32 s64, s64, 40960
    s_mul_i32 s25, s{S_CB}, 5120
    s_add_u32 s64, s64, s25
    v_lshlrev_b32 v{VL0}, 4, v1
    v_add_u32 v{VWA}, s64, v{VL0}
    s_movk_i32 s100, 4096
    s_lshr_b32 s64, s{S_U0}, 2
    s_lshl_b32 s64, s64, 1
    s_add_u32 s25, s{S_U0}, 6
    s_lshr_b32 s25, s25, 2
    s_lshl_b32 s25, s25, 1
    s_add_u32 s25, s25, 1
    s_min_u32 s25, s25, 53
    v_add_u32 v4, s64, v1
    v_min_u32 v4, s25, v4
    v_subrev_u32 v5, 8, v1
    v_min_u32 v5, 13, v5
    v_add_u32 v5, s65, v5
    v_min_u32 v5, 53, v5
    v_subrev_u32 v6, 42, v5
    v_min_u32 v5, v5, v6
    v_add_u32 v5, 54, v5
    v_cmp_gt_u32 vcc, 8, v1
    v_cndmask_b32 v4, v5, v4, vcc
    v_lshlrev_b32 v{VFA}, 7, v4
    s_mov_b32 s25, {hex(WS_FLAGW)}''')
    k.srd(R_A, 54 * 40960, base=S_WS, off=WS_WDP)
    k.srd(R_B, 128 * AST, base=S_WS, off=WS_ACT)
def flag_load(k, so, va=VFA, vd=VFD): k(f'buffer_load_dword v{vd}, v{va}, {srd(R_WS)}, {so} offen sc1')
def flag_wait(k, so, va=VFA, vd=VFD, cnt=26):
    L = k.lab('fw')
    k(f'''v_cmp_ne_u32 vcc, s{S_TAG}, v{vd}
    s_mov_b32 s{cnt}, 0
    s_cbranch_vccz {L}_ok
    ;@push
    {L}:''')
    flag_load(k, so, va, vd)
    k(f'''s_add_u32 s{cnt}, s{cnt}, 1
    s_waitcnt vmcnt(0)
    v_cmp_ne_u32 vcc, s{S_TAG}, v{vd}
    s_cmp_gt_u32 s{cnt}, 0x40000
    s_cbranch_scc1 {L}_ok
    s_cbranch_vccnz {L}
    ;@pop
    {L}_ok:''')
def dma_round(R):
    o = [f's_add_u32 s27, s{S_WB}, {R*16384}', f's_add_u32 m0, s{S_W12}, {(R % 9)*16384}']
    for p in range(4): o += [f';@tag r{R}', f'buffer_load_dwordx4 v{VL0}, {srd(R_WS)}, s27 offen offset:{p*1024} sc1 lds']
    return o
def wd_loads(q0, q1, dst=None, va=VWA):
    o = []
    for q in range(q0, q1):
        kk, j = divmod(q, 5)
        o.append(f'buffer_load_dwordx4 {dst or wreg(q)}, v{va}, {srd(R_A)}, ' + (f'0 offen offset:{j*1024} sc1' if j < 4 else 's100 offen sc1'))
        if j == 4 and kk < 13: o.append(f'v_add_u32 v{va}, ' + (f's{S_WRAP}' if kk == 6 else '40960') + f', v{va}')
    return o
```

```python
from common import *
V_LANE = 1
def prologue(k, end_label):
    n = k.name
    k(f'''s_cmp_ge_u32 s2, 256
    s_cbranch_scc1 {end_label}
    s_load_dwordx16 s[4:19], s[0:1], 0
    s_load_dwordx16 s[20:35], s[0:1], 64
    s_getpc_b64 s[62:63]
    {n}_pc0:
    s_lshr_b32 s{S_I}, s2, 3
    s_and_b32 s{S_XCD}, s2, 7
    v_lshrrev_b32 v2, 6, v0
    v_and_b32 v1, 63, v0
    s_lshl_b32 s64, s{S_I}, 12
    v_lshl_add_u32 v4, v0, 4, s64
    v_readfirstlane_b32 s{S_WAVE}, v2
    v_min_u32 v4, {n}_last-{n}_pc0-16, v4
    v_mov_b32 v5, s63
    v_add_co_u32 v4, vcc, s62, v4
    v_addc_co_u32 v5, vcc, 0, v5, vcc
    v_mov_b32 v250, v4
    v_mov_b32 v251, v5''')
    if cfg.warm == 0: k('global_load_dwordx4 v[252:255], v[250:251], off')
    prof_init(k)
    k(f'''v_lshrrev_b32 v4, 5, v0
    s_lshl_b32 s64, s2, 3
    v_add_u32 v14, s64, v4
    s_movk_i32 s65, 1280
    v_mul_lo_u32 v2, v14, s65
    v_and_b32 v4, 31, v0
    v_lshl_add_u32 v15, v4, 3, v2
    v_lshl_add_u32 v2, v4, 4, v2
    v_mov_b32 v3, 0
    s_waitcnt lgkmcnt(0)''')
    k.srd(R_X, T * D * 2, base=S_X)
    k.srd(R_WS, WS_SIZE, base=S_WS)
    k(f'''buffer_load_dwordx4 v[4:7], v2, {srd(R_X)}, 0 offen
    buffer_load_dwordx4 v[8:11], v2, {srd(R_X)}, 0 offen offset:512
    buffer_load_dwordx2 v[12:13], v15, {srd(R_X)}, 0 offen offset:1024
    buffer_load_dword v3, v3, {srd(R_WS)}, 0 offen sc1''')
    if cfg.warm == 1: k('global_load_dwordx4 v[252:255], v[250:251], off')
    k.srd(R_OUT, T * D * 2, base=S_OUT)
    if cfg.tlb:
        k(f'''v_mul_u32_u24 v248, 0x50000, v1
        v_mul_u32_u24 v249, 40960, v1
        s_cmp_lg_u32 s{S_WAVE}, 3
        s_cbranch_scc1 {n}_ntlb
        ;@maybe_begin
        buffer_load_dword v248, v248, {srd(R_WS)}, 0 offen
        buffer_load_dword v249, v249, {srd(R_OUT)}, 0 offen
        ;@maybe_end
        {n}_ntlb:''')
    stamp(k, 0)
def ln1(k):
    k('s_mov_b32 s62, 0x3f803f80\nv_mov_b32 v16, 0\nv_mov_b32 v17, 0')
    for r in range(4, 14):
        k(f'v_dot2_f32_bf16 v16, v{r}, s62, v16\nv_dot2_f32_bf16 v17, v{r}, v{r}, v17')
    k(f's_mov_b32 s63, 1664525\nv_mul_lo_u32 v3, v3, s63\nv_lshlrev_b32 v14, 3, v14')
    for sh in (8, 4, 2, 1):
        k(f'v_add_f32 v16, v16, v16 row_ror:{sh}\nv_add_f32 v17, v17, v17 row_ror:{sh}')
    k(f'''v_add_u32 v3, 1013904223, v3
    v_mov_b32 v18, v16
    v_mov_b32 v19, v17
    v_readfirstlane_b32 s{S_TAG}, v3
    v_permlane16_swap_b32 v16, v18
    v_permlane16_swap_b32 v17, v19
    v_add_f32 v16, v16, v18
    v_add_f32 v17, v17, v19
    v_mul_f32 v16, {fl(1/D)}, v16
    v_mul_f32 v17, {fl(1/D)}, v17
    v_fma_f32 v17, -v16, v16, v17
    v_max_f32 v17, 0, v17
    v_cvt_pk_bf16_f32 v17, v17, v17
    v_and_b32 v17, 0xffff0000, v17
    v_add_f32 v17, {fl(1e-5)}, v17
    v_cvt_pk_bf16_f32 v17, v17, v17
    v_and_b32 v17, 0xffff0000, v17
    v_sqrt_f32 v17, v17
    s_mov_b32 exec_lo, 1
    s_mov_b32 exec_hi, 1
    s_movk_i32 s62, {hex(WS_STATS)}
    v_cvt_pk_bf16_f32 v2, v16, v17
    buffer_store_dwordx2 v[2:3], v14, {srd(R_WS)}, s62 offen sc1
    s_mov_b64 exec, -1''')
```

```python
from common import *
from p_pro import ln1
from p_conv import publish
import p_pre
WST = 20608
UPO = 10240 + 64
RED = 4 * WST
def rep_w_loads(k):
    k.srd(R_A, D * F * 2, base=S_WG); k.srd(R_B, D * F * 2, base=S_WU)
    k(f'''s_lshr_b32 s64, s{S_CG}, 1
    s_and_b32 s65, s{S_CG}, 1
    s_mul_i32 s66, s65, 320
    s_mul_i32 s67, s{S_WAVE}, 80
    s_add_u32 s66, s66, s67
    s_mul_i32 s66, s66, 3456
    s_lshl_b32 s67, s64, 7
    s_add_u32 s66, s66, s67
    s_mul_i32 s68, s{S_WAVE}, {WST}
    v_lshrrev_b32 v20, 3, v1
    s_movk_i32 s67, 3456
    v_mul_lo_u32 v20, v20, s67
    v_and_b32 v21, 7, v1
    v_lshl_add_u32 v20, v21, 4, v20''')
    for i in range(10):
        for m, R in ((0, R_A), (1, R_B)):
            k(f's_add_u32 m0, s68, {i*1024 + m*UPO}\ns_nop 0\n;@tag w{i//2}\nbuffer_load_dwordx4 v20, {srd(R)}, s66 offen lds')
        if i < 9: k(f's_add_u32 s66, s66, {8*3456}')
def rep_w(k):
    k(f'''v_lshrrev_b32 v20, 4, v1
    v_and_b32 v21, 1, v20
    s_movk_i32 s67, {UPO}
    v_mul_lo_u32 v21, v21, s67
    v_lshrrev_b32 v20, 1, v20
    v_lshl_add_u32 v21, v20, 10, v21
    v_bfe_u32 v20, v1, 2, 2
    v_lshl_add_u32 v21, v20, 7, v21
    v_and_b32 v20, 1, v1
    v_lshl_add_u32 v21, v20, 4, v21
    v_bfe_u32 v20, v1, 1, 1
    v_lshl_add_u32 v21, v20, 3, v21
    v_add_u32 v21, s68, v21
    v_lshlrev_b32 v22, 4, v1
    s_mul_i32 s69, s64, {4*41}
    s_lshl_b32 s70, s65, 2
    s_add_u32 s70, s70, s{S_WAVE}''')
    for u in range(4):
        k(f'''s_lshl_b32 s71, s64, 2
        s_add_u32 s71, s71, {u}
        s_mul_i32 s72, s71, 19
        s_lshr_b32 s72, s72, 9
        s_mul_i32 s73, s72, 27
        s_sub_u32 s73, s71, s73
        s_mul_i32 s73, s73, 37
        s_lshr_b32 s73, s73, 8
        s_lshl_b32 s72, s72, 2
        s_add_u32 s72, s72, s73
        s_sub_u32 s72, s70, s72
        s_and_b32 s72, s72, 7
        s_mul_i32 s72, s72, 5
        s_mul_i32 s71, s71, 41
        s_add_u32 s71, s71, s72
        s_lshl_b32 s71, s71, 10
        s_add_u32 s{74+u}, s71, {hex(WS_WP)}''')
    for r in range(24, 28): k(f'v_mov_b32 v{r}, 0x3f803f80')
    for ks in range(5):
        k(f';@waitvm w{ks}')
        for u in range(4):
            fr = 32 + 16 * ks + 4 * u
            for q in range(2): k(f'ds_read_b64_tr_b16 v[{fr+2*q}:{fr+2*q+1}], v21 offset:{ks*2048 + q*512 + u*32}')
        for u in range(4):
            fr = 32 + 16 * ks + 4 * u; acc = 128 + 16 * u
            if ks == 4: k(f's_add_u32 s{74+u}, s{74+u}, 4096')
            k(f'buffer_store_dwordx4 v[{fr}:{fr+3}], v22, {srd(R_WS)}, s{74+u} offen offset:{(ks%4)*1024} sc1')
            k(f'v_mfma_f32_32x32x16_bf16 v[{acc}:{acc+15}], v[24:27], v[{fr}:{fr+3}], ' + ('0' if ks == 0 else f'v[{acc}:{acc+15}]'))
    k(f'''v_and_b32 v20, 31, v1
    s_lshl_b32 s71, s{S_WAVE}, 9
    s_add_u32 s71, s71, {RED}
    v_lshl_add_u32 v23, v20, 2, s71''')
    for u in range(4): k(f'ds_write_b32 v23, v{128+16*u} offset:{u*128}')
    k(f'''s_lshl_b32 s71, s{S_WAVE}, 7
    s_add_u32 s71, s71, {RED}
    v_lshl_add_u32 v23, v20, 2, s71
    s_waitcnt lgkmcnt(0)
    s_barrier''')
    for w in range(4): k(f'ds_read_b32 v{24+w}, v23 offset:{w*512}')
    k(f'''s_mul_i32 s71, s{S_WAVE}, 41
    s_add_u32 s71, s71, s69
    s_add_u32 s71, s71, 40
    s_lshl_b32 s71, s71, 10
    s_lshl_b32 s72, s65, 9
    s_add_u32 s71, s71, s72
    s_add_u32 s71, s71, {hex(WS_WP)}
    v_add_f32 v24, v24, v25
    v_add_f32 v26, v26, v27
    v_add_f32 v24, v24, v26
    v_cvt_pk_bf16_f32 v25, v24, v24
    v_and_b32 v25, 0xffff0000, v25
    v_sub_f32 v24, v24, v25
    v_cvt_pk_bf16_f32 v28, v25, v24
    v_and_b32 v26, 0xffff0000, v28
    v_sub_f32 v24, v24, v26
    v_mov_b32 v30, 0
    v_mov_b32 v31, 0
    v_cvt_pk_bf16_f32 v29, v24, v30
    s_mov_b32 exec_hi, 0
    buffer_store_dwordx4 v[28:31], v22, {srd(R_WS)}, s71 offen sc1
    s_mov_b64 exec, -1''')
def rep_d_loads(k, second):
    k(f's_add_u32 s66, s64, {42 if second else 0}\ns_mul_i32 s66, s66, 40960\ns_add_u32 s66, s66, s68')
    for i in range(10):
        if i % 4 == 0: k(f's_add_u32 m0, s68, {i*1024 + (40960 if second else 0)}\ns_add_u32 s67, s66, {i*1024}')
        k(f'buffer_load_dwordx4 v22, {srd(R_A)}, s67 offen offset:{(i%4)*1024} lds')
def rep_d(k, second):
    o = 40960 if second else 0
    k(f's_add_u32 s66, s64, {42 if second else 0}\ns_mul_i32 s66, s66, 40960\ns_add_u32 s66, s66, s68\ns_add_u32 s66, s66, {hex(WS_WDP)}')
    for j in range(10):
        for q in range(2): k(f'ds_read_b64_tr_b16 v[{32+4*j+2*q}:{33+4*j+2*q}], v21 offset:{o + q*4*1280 + j*32}')
    for j in range(10):
        if j % 4 == 0: k(f's_add_u32 s67, s66, {j*1024}')
        k(f'buffer_store_dwordx4 v[{32+4*j}:{35+4*j}], v22, {srd(R_WS)}, s67 offen offset:{(j%4)*1024} sc1')
def repack_wg(k):
    LD, LJ = k.lab('wd'), k.lab('rj')
    k(f'''s_mul_i32 s{S_CG}, s{S_XCD}, 12
    s_mul_i32 s64, s64, 3
    s_sub_u32 s65, s65, 1
    s_mul_i32 s65, s65, s66
    s_add_u32 s{S_CG}, s{S_CG}, s64
    s_add_u32 s{S_CG}, s{S_CG}, s65
    s_cmp_ge_u32 s{S_CG}, 54
    s_cbranch_scc1 {LD}
    ;@push''')
    rep_w_loads(k); ln1(k); stamp(k, 1); rep_w(k)
    k(f's_branch {LJ}\n;@pop\n{LD}:')
    k.srd(R_A, D * F * 2, base=S_WD)
    L1, L2 = k.lab('d1'), k.lab('d2')
    k(f'''s_sub_u32 s64, s{S_CG}, 54
    s_mul_i32 s68, s{S_WAVE}, 10240
    v_lshlrev_b32 v22, 4, v1''')
    rep_d_loads(k, False)
    k(f's_cmp_ge_u32 s64, 12\ns_cbranch_scc1 {L1}\n;@maybe_begin')
    rep_d_loads(k, True)
    k(f';@maybe_end\n{L1}:')
    ln1(k); stamp(k, 1)
    k(f'''v_lshrrev_b32 v20, 4, v1
    s_movk_i32 s67, 1280
    v_lshlrev_b32 v20, 3, v20
    v_bfe_u32 v21, v1, 2, 2
    v_add_u32 v20, v20, v21
    v_mul_lo_u32 v21, v20, s67
    v_and_b32 v20, 3, v1
    v_lshl_add_u32 v21, v20, 3, v21
    s_mul_i32 s67, s{S_WAVE}, 320
    v_add_u32 v21, s67, v21
    s_waitcnt vmcnt(0)
    s_barrier''')
    rep_d(k, False)
    k(f's_cmp_ge_u32 s64, 12\ns_cbranch_scc1 {L2}\n;@maybe_begin')
    rep_d(k, True)
    k(f';@maybe_end\n{L2}:\n{LJ}:')
    stamp(k, 4)
    publish(k, f's_lshl_b32 s64, s{S_CG}, 7\ns_add_u32 s64, s64, {hex(WS_FLAGW)}', 64)
    stamp(k, 5)
    k(';@forget')
    p_pre.ids(k)
    p_pre.flag_load(k, 's25'); p_pre.flag_wait(k, 's25')
    stamp(k, 6)
    for R in range(6):
        for l in p_pre.dma_round(R): k(l)
    n = cfg.nc1 + cfg.nc2
    for l in p_pre.wd_loads(0, n): k(l)
    if cfg.warmw:
        for R in range(6, 18):
            k(f's_add_u32 s27, s{S_WB}, {R*16384}')
            for p in range(4): k(f'buffer_load_dwordx4 v[32:35], v{VL0}, {srd(R_WS)}, s27 offen offset:{p*1024} sc1')
        k(f'v_mov_b32 v20, v{VWA}')
        for l in p_pre.wd_loads(n, 70, dst='v[32:35]', va=20): k(l)
    stamp(k, 7)
    k(f'''s_mul_i32 s64, s{S_CG}, 5
    s_lshr_b32 s64, s64, 2
    s_add_u32 s64, s64, 20
    s_lshl_b32 s64, s64, 7
    s_add_u32 s25, s64, {hex(WS_FLAGH)}
    v_mov_b32 v{VFA}, 0''')
    p_pre.flag_load(k, 's25'); p_pre.flag_wait(k, 's25')
    k('s_waitcnt vmcnt(0)')
```

```python
import sys
from common import *
import asmpass, p_pro, p_conv
NAME = 'sequential_preLN__ssm_conv_s4__geglu_ffn__prompt_kernel'
def gen(path, **opt):
    for a, b in opt.items(): setattr(cfg, a, b)
    k = Kern(NAME, 256, 256, LDS_TOTAL, vgpr=256, agpr=256)
    END, FIN, REP, JOIN = NAME + '_end', NAME + '_fin', NAME + '_rep', NAME + '_join'
    p_pro.prologue(k, END)
    k(f'''s_lshr_b32 s64, s{S_I}, 2
    s_and_b32 s65, s{S_I}, 3
    s_and_b32 s66, s64, 1
    s_lshr_b32 s64, s64, 1
    s_add_u32 s67, s65, s66
    s_cmp_ge_u32 s67, 3
    s_cbranch_scc1 {REP}''')
    pre = list(k.L)
    p_conv.conv_wg(k)
    k(f's_branch {JOIN}')
    partA = k.L; k.L = []
    k(f'{REP}:')
    if cfg.stop == 'conv':
        p_pro.ln1(k)
    else:
        import p_rep
        p_rep.repack_wg(k)
    partB = k.L; k.L = []
    k(f'{JOIN}:')
    if cfg.stop not in ('conv', 'rep'):
        import p_g1, p_g2
        p_g1.gemm1(k)
        if cfg.stop != 'g1': p_g2.gemm2(k)
    prof_store(k)
    k(f'{END}:\ns_endpgm\n{NAME}_last:')
    partC = k.L
    if cfg.abl:
        import re
        def drop(l):
            if 'h' in cfg.abl and re.search(r'buffer_load_dwordx4 v\[\d+:\d+\], v[37], s\[36:39\], s(8|9|1[0-5]) ', l): return True
            if 'w' in cfg.abl and 'buffer_load_dwordx4' in l and ', v19,' in l and 's[44:47]' in l: return True
            if 'a' in cfg.abl and 'buffer_load_dwordx4' in l and 's[48:51]' in l: return True
            if 'd' in cfg.abl and l.rstrip().endswith(' lds'): return True
            if 'e' in cfg.abl and re.search(r'v_(exp|rcp)_f32 v2[0-7]', l): return True
            if 's' in cfg.abl and 'buffer_store_dwordx4' in l and 's68' in l: return True
            return False
        partC = [l for l in partC if not drop(l)]
    st = {}
    A = asmpass.run(partA, stats=st); sa = dict(st)
    AB = asmpass.run(pre + [';@cut'] + partB, stats=st); sb = dict(st)
    B = AB[AB.index(';@cut') + 1:]
    C = asmpass.run(partC, stats=st)
    k.L = A + B + C
    open(path, 'w').write(build([k], single=True))
    print(path, 'lines', len(k.L), sa, sb, st)
if __name__ == '__main__':
    path = sys.argv[1]
    opt = {}
    for a in sys.argv[2:]:
        if '=' in a:
            x, y = a.split('='); opt[x] = int(y) if y.lstrip('-').isdigit() else y
        else: opt[a] = True
    gen(path, **opt)
```

```python
import re, copy
REG = re.compile(r'^(-|\|)?([vas])(\d+)\|?$')
RNG = re.compile(r'^(-|\|)?([vas])\[(\d+):(\d+)\]\|?$')
TRANS = ('v_exp_f32', 'v_log_f32', 'v_rcp_f32', 'v_rsq_f32', 'v_sqrt_f32', 'v_sin_f32', 'v_cos_f32')
def regs(tok):
    tok = tok.strip()
    if tok.startswith('neg(') or tok.startswith('abs('): tok = tok[4:-1]
    m = REG.match(tok)
    if m: return {(m.group(2), int(m.group(3)))}
    m = RNG.match(tok)
    if m: return {(m.group(2), i) for i in range(int(m.group(3)), int(m.group(4)) + 1)}
    if tok == 'vcc': return {('s', 106), ('s', 107)}
    if tok == 'vcc_lo': return {('s', 106)}
    if tok == 'vcc_hi': return {('s', 107)}
    if tok == 'exec': return {('s', 126), ('s', 127)}
    if tok == 'exec_lo': return {('s', 126)}
    if tok == 'exec_hi': return {('s', 127)}
    if tok == 'm0': return {('s', 124)}
    return set()
VCC = {('s', 106), ('s', 107)}; EXEC = {('s', 126), ('s', 127)}; M0 = {('s', 124)}
class Ins:
    def __init__(self, text):
        self.text = text
        t = text.split(';')[0].strip()
        p = t.split(None, 1)
        self.op = op = p[0]
        rest = p[1] if len(p) > 1 else ''
        ops, cur, d = [], '', 0
        for ch in rest:
            if ch == '[': d += 1
            if ch == ']': d -= 1
            if ch == ',' and d == 0: ops.append(cur.strip()); cur = ''
            else: cur += ch
        if cur.strip(): ops.append(cur.strip())
        mods = ''
        if ops:
            last = ops[-1].split(None, 1)
            ops[-1] = last[0]
            mods = last[1] if len(last) > 1 else ''
        self.ops, self.mods = ops, mods
        R = [regs(o) for o in ops]
        U = lambda l: set().union(*l) if l else set()
        self.dst, self.src = set(), set()
        self.kind = 'other'; self.passes = 0; self.srcC = set(); self.srcAB = set(); self.data = set()
        self.vm = self.lg = False; self.smem = False
        if op.startswith('v_mfma'):
            self.kind = 'mfma'; self.dst = R[0]; self.srcAB = R[1] | R[2]; self.srcC = R[3]; self.src = self.srcAB | self.srcC
            self.passes = 8 if '32x32x16' in op else 4 if '16x16x32' in op else 2 if '4x4x4' in op else None
            assert self.passes, op
        elif op.startswith('v_'):
            self.kind = 'valu'
            if (op.startswith('v_permlane') and 'swap' in op) or op.startswith('v_swap'): self.dst = R[0] | R[1]; self.src = R[0] | R[1]
            elif op.startswith('v_cmpx'): self.dst = set(EXEC); self.src = U(R)
            elif op.startswith('v_cmp'): self.dst = R[0]; self.src = U(R[1:])
            elif '_co_' in op: self.dst = R[0] | R[1]; self.src = U(R[2:])
            else:
                self.dst = R[0]; self.src = U(R[1:])
                if op.startswith(('v_fmac', 'v_dot2c', 'v_mac', 'v_writelane')) or 'dpp' in op or 'row_' in mods or 'quad_perm' in mods or 'dst_sel' in mods: self.src |= R[0]
                if op.startswith('v_cndmask') and len(ops) == 3: self.src |= VCC
            self.trans = op.replace('_e32', '').replace('_e64', '') in TRANS
            self.dpp = 'dpp' in op or 'row_' in mods or 'quad_perm' in mods or 'wave_' in mods
            self.dot = op.startswith('v_dot')
            self.opsel = 'dst_sel' in mods
        elif op.startswith('ds_'):
            self.kind = 'ds'; self.lg = True
            if op.startswith(('ds_read', 'ds_bpermute', 'ds_permute', 'ds_swizzle')) or '_rtn' in op: self.dst = R[0]; self.src = U(R[1:])
            else: self.src = U(R)
        elif op.startswith(('buffer_', 'global_')):
            self.kind = 'vmem'; self.vm = True
            if op.startswith('buffer_inv') or op.startswith('buffer_wbl2'): pass
            elif '_load' in op:
                if re.search(r'\blds\b', mods) or 'load_lds' in op: self.src = U(R) | M0; self.kind = 'dma'
                else: self.dst = R[0]; self.src = U(R[1:])
            else:
                self.src = U(R)
                if 'x4' in op or 'x3' in op: self.data = R[0] if op.startswith('buffer') else R[1]
        elif op.startswith(('s_load', 's_buffer_load', 's_memtime', 's_memrealtime')):
            self.kind = 'smem'; self.lg = True; self.smem = True; self.dst = R[0]; self.src = U(R[1:])
        elif op == 's_nop': self.kind = 'nop'; self.n = int(ops[0], 0) + 1
        elif op == 's_waitcnt': self.kind = 'wait'
        elif op.startswith('s_'):
            self.kind = 'salu'
            if op.startswith(('s_cmp', 's_cbranch', 's_branch', 's_barrier', 's_endpgm', 's_sleep', 's_setprio', 's_bitcmp', 's_setpc')): self.src = U(R)
            else:
                self.dst = R[0]; self.src = U(R[1:])
                if 'saveexec' in op: self.dst |= EXEC; self.src |= EXEC
                if op.startswith(('s_cmov', 's_addk', 's_mulk')): self.src |= R[0]
        else: raise ValueError(text)
def is_v(r): return r[0] in 'va'
XD = {2: 5, 4: 8, 8: 12}; XC = {2: 4, 4: 6, 8: 10}; XW = {2: 1, 4: 3, 8: 7}
def hazard(p, c):
    n = 0
    vw = {r for r in p.dst if is_v(r)}; sw = {r for r in p.dst if r[0] == 's'}
    if p.kind == 'valu':
        if c.kind == 'mfma' and vw & c.src: n = max(n, 3 if p.dot else 2)
        if c.kind == 'mfma' and sw & EXEC: n = max(n, 4)
        if c.kind == 'valu':
            if c.dpp and vw & c.src: n = max(n, 2)
            if c.dpp and sw & EXEC: n = max(n, 5)
            if c.op.startswith('v_permlane') and vw & c.src: n = max(n, 2)
            if c.op.startswith('v_permlane') and sw & EXEC: n = max(n, 4)
            if c.op.startswith(('v_readlane', 'v_readfirstlane')) and vw & c.src: n = max(n, 1)
            if c.op.startswith(('v_readlane', 'v_readfirstlane', 'v_writelane')) and sw & EXEC: n = max(n, 4)
            if c.op.startswith(('v_readlane', 'v_writelane')) and sw & c.src: n = max(n, 4)
            if sw & c.src: n = max(n, 2)
            if p.trans and not c.trans and vw & c.src: n = max(n, 1)
            if p.opsel and vw & (c.src | c.dst): n = max(n, 1)
            if p.dot and vw & (c.src | c.dst):
                if not (c.op == p.op and not (vw & (regs(c.ops[1]) | regs(c.ops[2])))): n = max(n, 3)
        if c.kind in ('vmem', 'dma') and sw & c.src: n = max(n, 5)
        if p.dot and c.kind in ('vmem', 'ds') and vw & c.src: n = max(n, 3)
        if p.trans and c.kind in ('vmem', 'ds') and vw & c.src: n = max(n, 1)
    if p.kind == 'salu' and sw & M0 and c.kind == 'dma': n = max(n, 1)
    if p.kind == 'vmem' and p.data and p.data & c.dst: n = max(n, 2)
    if p.kind == 'mfma':
        P = p.passes
        if c.kind == 'mfma':
            if p.dst & c.srcAB: n = max(n, XD[P])
            if p.dst & c.srcC:
                if p.dst == c.srcC and c.passes == P: n = max(n, 2 if P == 2 else 0)
                else: n = max(n, XC[P])
            elif p.dst & c.dst: n = max(n, XC[P])
        elif c.kind in ('valu', 'vmem', 'ds', 'dma'):
            if p.dst & (c.src | c.dst): n = max(n, XD[P])
            if c.kind == 'valu' and p.srcC & c.dst: n = max(n, XW[P])
    return n
def run(lines, lazy_lg=0, lazy_vm=0, stats=None):
    out = []; hist = []
    pos = 0
    q = {'vm': [], 'lg': []}
    tag = None; maybe = 0; nins = 0; stack = []
    st = dict(nop=0, wait=0)
    def later(cls, i): return sum(1 for o in q[cls][i + 1:] if not o['maybe'])
    def emit(text):
        nonlocal pos, nins
        I = Ins(text)
        need = 0
        for (p, pp) in hist:
            h = hazard(p, I)
            if h: need = max(need, h - (pos - pp - 1))
        if need > 0:
            out.append(f'  s_nop {need - 1}'); pos += need; st['nop'] += 1
        out.append('  ' + text.strip())
        hist.append((I, pos)); pos += I.n if I.kind == 'nop' else 1
        while hist and pos - hist[0][1] > 24: hist.pop(0)
        nins += 1
        return I
    def do_wait(vm=None, lg=None):
        s = []
        if vm is not None:
            assert vm <= 63; s.append(f'vmcnt({vm})')
        if lg is not None:
            assert lg <= 15; s.append(f'lgkmcnt({lg})')
        emit('s_waitcnt ' + ' '.join(s)); st['wait'] += 1
        apply_wait(vm, lg)
    def apply_wait(vm, lg):
        for cls, n in (('vm', vm), ('lg', lg)):
            if n is None: continue
            if n == 0: q[cls].clear(); continue
            if cls == 'lg' and any(o['smem'] for o in q[cls]): continue
            keep = [o for i, o in enumerate(q[cls]) if later(cls, i) < n]
            q[cls][:] = keep
    def need_wait(cls, idx, lazy):
        if lazy:
            while idx + 1 < len(q[cls]) and nins - q[cls][idx + 1]['idx'] >= lazy: idx += 1
        if cls == 'lg' and any(o['smem'] for o in q[cls]): return 0
        return min(later(cls, idx), 63 if cls == 'vm' else 15)
    for l in lines:
        s = l.strip()
        if not s: continue
        if s.startswith(';@'):
            d = s[2:].split()
            if d[0] == 'tag': tag = d[1]
            elif d[0] in ('waitvm', 'waitlg'):
                cls = d[0][4:]
                ids = [i for i, o in enumerate(q[cls]) if o['tag'] == d[1]]
                if ids:
                    n = need_wait(cls, ids[-1], 0)
                    do_wait(**{cls: n})
            elif d[0] == 'maybe_begin': maybe += 1
            elif d[0] == 'maybe_end': maybe -= 1
            elif d[0] == 'forget': q['vm'].clear(); q['lg'].clear()
            elif d[0] == 'push': stack.append((copy.deepcopy(q), list(hist), pos))
            elif d[0] == 'pop':
                qq, hh, pp = stack.pop(); q['vm'][:] = qq['vm']; q['lg'][:] = qq['lg']; hist[:] = hh; pos = pp
            elif d[0] == 'cut': out.append(';@cut')
            elif d[0] == 'raw': out.append('  ' + s[6:])
            elif d[0] == 'lazy': lazy_lg, lazy_vm = int(d[1]), int(d[2])
            else: raise ValueError(s)
            continue
        if s.startswith(';') or s.startswith('.'): out.append(l); continue
        if s.endswith(':'):
            out.append(s); continue
        I = Ins(s)
        if I.kind == 'wait':
            vm = re.search(r'vmcnt\((\d+)\)', s); lg = re.search(r'lgkmcnt\((\d+)\)', s)
            emit(s); apply_wait(int(vm.group(1)) if vm else None, int(lg.group(1)) if lg else None); continue
        touch = I.src | I.dst
        w = {}
        for cls, lazy in (('vm', lazy_vm), ('lg', lazy_lg)):
            ids = [i for i, o in enumerate(q[cls]) if o['dst'] & touch]
            if ids and ((cls == 'vm' and I.vm) or (cls == 'lg' and I.lg and not I.smem and not any(o['smem'] for o in q[cls]))):
                ids = [i for i in ids if q[cls][i]['dst'] & I.src]
            if ids: w[cls] = need_wait(cls, ids[-1], lazy)
        if w: do_wait(**w)
        I = emit(s)
        for cls, f in (('vm', I.vm), ('lg', I.lg)):
            if f:
                q[cls].append(dict(dst=set(I.dst), tag=tag, maybe=maybe > 0, smem=I.smem, idx=nins))
        if I.vm or I.lg: tag = None
        if len(q['vm']) > 200: q['vm'].pop(0)
    if stats is not None: stats.update(st)
    return out
```

```python
import math
from asmlib import *
T, D, F, N = 2048, 640, 1728, 128
WS_EPOCH = 0x0
WS_ST2   = 0xA000
WS_FLAGU = 0x20000
WS_FLAGW = 0x40000
WS_FLAGD = 0x4C000
WS_FLAGH = 0x50000
WS_FLAGA = 0xA0000
WS_HP    = 0x100000
WS_ACT   = 0x400000
HTB, AST = 40960, 55296
WS_WDP   = 0xB00000
WS_WP    = 0xE00000
WS_UP    = 0x1300000
CGS      = 33024
WS_PROF  = 0xF000000
WS_SIZE  = 0x10000000
OOB      = 0x40000000
S_X, S_ARE, S_AIM, S_BRE, S_BIM, S_CRE, S_CIM, S_LDT = 4, 6, 8, 10, 12, 14, 16, 18
S_DSK, S_BX, S_WG, S_WU, S_WD, S_OUT, S_DBG, S_WS = 20, 22, 24, 26, 28, 30, 32, 34
R_WS, R_X, R_A, R_B, R_OUT = 36, 40, 44, 48, 52
S_TAG, S_WAVE, S_XCD, S_I = 56, 57, 58, 59
S_CG = 60
S_RB, S_C, S_WB = 61, 62, 63
S_TB, S_CB, S_W12, S_U0 = 4, 5, 6, 7
S_HG, S_AO = 8, 28
S_FW, S_FD = 18, 19
VTAG, VL0, VWA, VF0 = 2, 3, 0, 15
VFW, VFD, VFX = 12, 13, 14
S_WDB, S_W10 = 79, 78
VST, VNEG, S_AS, S_A6 = 8, 4, 68, 66
S_PROF = 80
LOG2E = math.log2(math.e)
LDS_TOTAL = 163840
STG, SPITCH, SXO = 139264, 1312, 10496
class Cfg:
    prof = False
    cyc = False
    verbose = False
    fine = False
    fine_n = 0
    pw = 0
    rt = False
    rc = False
    gs = None
    stop = None
    nw0 = 4
    us0 = 0
    us = 0
    rord = 'uuuuuwwwwwwwwwwww'
    wdl = 0
    pf = 0
    up = 85
    fh = 4
    fw = 4
    wchk = 126
    dchk = 222
    hf = 60
    nc1 = 12
    nc2 = 8
    hr = 45
    h0 = 8
    bars = '146,194,264:10,340:11,408:14,470:17'
    word = '9,12,10,11,13,14,15,16,17'
    lh = 40
    lw = 40
    la = 50
    ld = 40
    sx = 100
    w2 = 1
    xo = '11,13,14,15,16,17,x0,x1,x2,x3'
    rdot = 1
    lwd = 1
    lb = 744
    vis = 100
    e4 = 549
    a4 = 670
    wdp = '10,4'
    rs0 = 645
    w54 = '600,8,4,645,6'
    ep = '252,308,364,420,476,532,588,640'
    ps0 = 20
    ps = 12
    a6 = 90
    ad = 60
    fd = 30
    wd0 = 150
cfg = Cfg()
def srd(r): return f's[{r}:{r+3}]'
def stamp(k, i):
    if not cfg.prof or cfg.gs: return
    k(f'{"s_memtime" if cfg.cyc else "s_memrealtime"} s[96:97]\ns_waitcnt lgkmcnt(0)\ns_mov_b32 s{S_PROF+i}, s96')
def lstamp(k, slot):
    if not cfg.gs: return
    g = [int(x) for x in str(cfg.gs).split(',')]
    if slot not in g: return
    i = g.index(slot)
    if cfg.rt == 2: k(f';@raw s_memtime s[{S_PROF+2*i}:{S_PROF+2*i+1}]\n;@raw s_memrealtime s[{S_PROF+8+2*i}:{S_PROF+8+2*i+1}]')
    else: k(f';@raw {"s_memrealtime" if cfg.rt else "s_memtime"} s[{S_PROF+2*i}:{S_PROF+2*i+1}]')
def prof_init(k):
    if not cfg.prof: return
    for i in range(16): k(f's_mov_b32 s{S_PROF+i}, 0')
def prof_store(k):
    if not cfg.prof: return
    L = k.lab('pf')
    k('s_waitcnt lgkmcnt(0)')
    if cfg.pw >= 0: k(f's_cmp_lg_u32 s{S_WAVE}, {cfg.pw}\ns_cbranch_scc1 {L}')
    k('s_mov_b64 exec, -1\nv_mov_b32 v250, v1\nv_mov_b32 v1, 0')
    for i in range(16): k(f'v_writelane_b32 v1, s{S_PROF+i}, {i}')
    k(f'''v_lshlrev_b32 v2, 2, v250
    s_lshl_b32 s96, s2, {6 if cfg.pw >= 0 else 8}
    s_lshl_b32 s97, s{S_WAVE}, 6
    s_add_u32 s96, s96, {0 if cfg.pw >= 0 else "s97"}
    s_add_u32 s96, s96, {hex(WS_PROF)}
    v_cmp_gt_u32 vcc, 64, v2
    s_and_saveexec_b64 s[98:99], vcc
    buffer_store_dword v1, v2, {srd(R_WS)}, s96 offen
    s_waitcnt vmcnt(0)
    {L}:''')
def pk(op, d, a, b, c=None, mods=''):
    r = lambda x: x if isinstance(x, str) else f'v[{x}:{x+1}]'
    s = f'v_pk_{op}_f32 {r(d)}, {r(a)}, {r(b)}'
    if c is not None: s += f', {r(c)}'
    return s + (' ' + mods if mods else '')
def cmul(k, z, x, e, t):
    k(pk('mul', t, x + 2, e + 2))
    k(pk('mul', t + 2, x, e + 2))
    k(pk('fma', z, x, e, t, 'neg_lo:[0,0,1] neg_hi:[0,0,1]'))
    k(pk('fma', z + 2, x + 2, e, t + 2))

class Buf:
    def __init__(s): s.L = []
    def __call__(s, t): s.L += [x.strip() for x in t.strip().split('\n') if x.strip()]
def icost(l):
    if l.startswith(';@') or l.endswith(':'): return 0
    op = l.split()[0]
    if op == 's_waitcnt': return 0.5
    if op.startswith(('buffer_', 'global_')): return 2
    if op.startswith(('v_permlane', 'v_swap')) or op in ('v_exp_f32', 'v_rcp_f32', 'v_sqrt_f32', 'v_rsq_f32', 'v_log_f32'): return 2
    return 1
def groups(L):
    G = []; cur = []
    for l in L:
        if G and not cur and (l.startswith(';@maybe_end') or l == 's_mov_b64 exec, -1'): G[-1].append(l); continue
        cur.append(l)
        if not l.startswith(';@') and not l.startswith('s_'): G.append(cur); cur = []
    if cur: G[-1] += cur
    return G
class Stream:
    def __init__(s, n, cap):
        s.n, s.cap = n, (cap if isinstance(cap, list) else [cap] * n)
        s.vm = [[] for _ in range(n)]; s.ot = [[] for _ in range(n)]; s.used = [0.0] * n
    def put(s, i, g, keep=False):
        isvm = any(l.startswith(('buffer_', 'global_')) for l in g)
        (s.vm if isvm else s.ot)[i].append((g, keep)); s.used[i] += sum(icost(l) for l in g)
    def at(s, L, slots, keep=False):
        it = iter(slots); cur = None
        for g in groups(L):
            if any(l.startswith(('buffer_', 'global_')) for l in g) or cur is None:
                cur = next(it)
                while s.vm[cur]: cur += 1
            s.put(cur, g, keep)
    def spread(s, L, a, b, keep=False):
        G = groups(L)
        free = [max(0.25, s.cap[i] - s.used[i]) for i in range(a, b)]
        C = sum(sum(icost(l) for l in g) for g in G); rho = C / sum(free)
        i = 0; cumf = free[0] * rho; c = 0.0; last = a - 1; lastvm = True
        for g in G:
            w = sum(icost(l) for l in g)
            while c + w / 2 > cumf and i + 1 < len(free): i += 1; cumf += free[i] * rho
            sl = max(a + i, last)
            if any(l.startswith(('buffer_', 'global_')) for l in g):
                if sl == last: sl += 1
                while s.vm[sl]: sl += 1
            s.put(sl, g, keep); last = sl; c += w
        return rho
    def lines(s, i, which, keep_only=False):
        return [l for g, kp in which[i] if kp or not keep_only for l in g]

def yds(jobs):
    n = len(jobs); res = [None] * n
    R = [float(j[0]) for j in jobs]; Dl = [float(j[1]) + 1 for j in jobs]
    left = list(range(n)); cuts = []
    def unmap(t, free):
        for a, b in free:
            if t < b - a - 1e-9: return a + t
            t -= b - a
        return free[-1][1]
    free = [(0.0, max(Dl))]
    r = R[:]; d = Dl[:]
    dens = []
    while left:
        best = None
        rs = sorted(set(r[i] for i in left)); ds = sorted(set(d[i] for i in left))
        for a in rs:
            js = sorted(d[i] for i in left if r[i] >= a)
            for c, b in enumerate(js):
                if c + 1 < len(js) and js[c + 1] == b: continue
                if b <= a: raise ValueError(('empty window', a, b))
                g = (c + 1) / (b - a)
                if best is None or g > best[0] + 1e-12: best = (g, a, b)
        g, a, b = best
        J = [i for i in left if r[i] >= a and d[i] <= b]
        t = a; todo = set(J)
        while todo:
            av = [i for i in todo if r[i] <= t + 1e-9]
            if not av: t = min(r[i] for i in todo); continue
            i = min(av, key=lambda i: (d[i], i)); res[i] = unmap(t, free); todo.discard(i); t += 1 / g
        A, Bq = unmap(a, free), unmap(b - 1e-6, free)
        dens.append((round(A), round(Bq), round(1 / g, 2)))
        nf = []; pos = 0.0
        for x, y in free:
            l0, l1 = pos, pos + y - x
            if l1 <= a or l0 >= b: nf.append((x, y))
            else:
                if l0 < a: nf.append((x, x + a - l0))
                if l1 > b: nf.append((x + b - l0, y))
            pos = l1
        free = nf or [(0.0, 0.0)]
        left = [i for i in left if i not in set(J)]
        f = lambda t: t if t <= a else (a if t <= b else t - (b - a))
        for i in left: r[i] = f(r[i]); d[i] = f(d[i])
    return res, dens
```

```python
from common import *
from p_pro import ln1, flag_store
import p_pre
TBL = 33792
CB0, CBS = 112064, 12944
KC0, KC1 = 4608, 4608 + 4160
XA, XS = 81664, 4112
OST, OSB = 98304, 4352
VU = 208
VUW, VXW, VDT, VDS = 200, 201, 202, 203
VXP, VXT, VCV, VTRD = 160, 176, 184, 192
VXR, VOW, VTR, VHS = 20, 21, 22, 23
ROWS = {0: [0, 1, 2, 3, 4, 5, 6, 7, 512, 516, 520, 1024, 1032, 1280, 1288, 8],
        1: [256, 256, 258, 260, 260, 260, 262, 264, 768, 772, 776, 1536, 1544, 1792, 1800, 264]}
def rows_of(off):
    return [8 * (r >> 2) + 4 * h + (r & 3) for h in (0, 1) for r in range(16) if ROWS[h][r] == off]
def zipl(*ls):
    out = []
    n = max(len(l) for l in ls)
    for i in range(n):
        for l in ls:
            a, b = i * len(l) // n, (i + 1) * len(l) // n
            out += l[a:b]
    return out
def prefetch(k):
    k(f'''s_mul_i32 s64, s{S_XCD}, 20
    s_sub_u32 s64, s{S_CG}, s64
    s_mul_i32 s65, s{S_XCD}, 12
    s_add_u32 s65, s65, s64
    s_lshl_b32 s65, s65, 2
    s_add_u32 s65, s65, s{S_WAVE}
    s_mul_i32 s66, s65, 4682
    s_lshr_b32 s66, s66, 16
    s_mul_i32 s67, s66, 14
    s_sub_u32 s67, s65, s67
    s_bitcmp0_b32 s67, 0
    s_cselect_b32 s{R_A}, s{S_WG}, s{S_WU}
    s_cselect_b32 s{R_A+1}, s{S_WG+1}, s{S_WU+1}
    s_lshr_b32 s67, s67, 1
    s_mul_i32 s67, s67, {96*3456}
    s_lshl_b32 s66, s66, 7
    s_add_u32 s67, s67, s66
    s_cmp_ge_u32 s65, 378
    s_cselect_b32 s67, {hex(OOB)}, s67
    s_sub_u32 s68, s64, 12
    s_mul_i32 s65, s{S_XCD}, 7
    s_add_u32 s68, s68, s65
    s_lshr_b32 s69, s{S_XCD}, 1
    s_mul_i32 s65, s69, 14
    s_sub_u32 s65, s68, s65
    s_mul_i32 s69, s69, 27
    s_and_b32 s66, s65, 1
    s_mul_i32 s66, s66, 14
    s_add_u32 s69, s69, s66
    s_lshr_b32 s66, s65, 1
    s_add_u32 s69, s69, s66
    s_cmp_eq_u32 s65, 13
    s_cselect_b32 s66, 0, 7
    s_lshr_b32 s65, s{S_WAVE}, 1
    s_mul_i32 s66, s66, s65
    s_add_u32 s69, s69, s66
    s_lshl_b32 s69, s69, 1
    s_and_b32 s65, s{S_WAVE}, 1
    s_add_u32 s69, s69, s65
    s_mul_i32 s69, s69, 10240
    s_cmp_eq_u32 s64, 19
    s_cselect_b32 s69, {hex(OOB)}, s69
    s_cmp_lt_u32 s64, 12
    s_cselect_b32 s67, s67, s69
    s_cselect_b32 s{R_A}, s{R_A}, s{S_WD}
    s_cselect_b32 s{R_A+1}, s{R_A+1}, s{S_WD+1}
    s_movk_i32 s65, 128
    s_cselect_b32 s65, 3456, s65
    s_cselect_b32 s66, 32, 16
    s_mov_b32 s{R_A+2}, {D*F*2}
    s_mov_b32 s{R_A+3}, 0x00020000''')
    if cfg.pf == 1:
        k(f'''v_mul_lo_u32 v204, v1, s65
        v_cmp_gt_u32 vcc, s66, v1
        s_lshl_b32 s65, s65, 6
        v_add_u32 v205, s65, v204
        v_cndmask_b32 v205, v{VF0}, v205, vcc
        buffer_load_dword v204, v204, {srd(R_A)}, s67 offen
        buffer_load_dword v205, v205, {srd(R_A)}, s67 offen''')
    else:
        k(f'''v_lshrrev_b32 v205, 1, v1
        v_mul_lo_u32 v204, v205, s65
        v_cmp_gt_u32 vcc, s66, v205
        v_and_b32 v205, 1, v1
        v_lshl_add_u32 v204, v205, 6, v204
        s_lshl_b32 s65, s65, 5
        v_add_u32 v205, s65, v204
        v_add_u32 v206, s65, v205
        v_cndmask_b32 v206, v{VF0}, v206, vcc
        buffer_load_dword v204, v204, {srd(R_A)}, s67 offen
        buffer_load_dword v205, v205, {srd(R_A)}, s67 offen
        buffer_load_dword v206, v206, {srd(R_A)}, s67 offen''')
def conv_loads(k):
    k(f'''s_mul_i32 s{S_CG}, s{S_XCD}, 20
    s_mul_i32 s64, s64, 5
    s_mul_i32 s66, s66, 3
    s_add_u32 s{S_CG}, s{S_CG}, s65
    s_add_u32 s64, s64, s66
    s_add_u32 s{S_CG}, s{S_CG}, s64
    s_lshl_b32 s64, s{S_CG}, 2
    s_add_u32 s64, s64, s{S_WAVE}
    s_lshl_b32 s64, s64, 1
    s_lshl_b32 s65, s{S_CG}, 10
    v_lshl_add_u32 v20, v0, 2, s65
    v_mov_b32 v21, s64
    global_load_ushort v{VDT}, v21, s[{S_LDT}:{S_LDT+1}]''')
    for i, p in enumerate((S_ARE, S_AIM, S_BRE, S_BIM, S_CRE, S_CIM)):
        k(f'global_load_dword v{24+i}, v20, s[{p}:{p+1}]')
    k(f'global_load_ushort v{VDS}, v21, s[{S_DSK}:{S_DSK+1}]')
    if cfg.pf: prefetch(k)
    k(f'''s_mul_i32 s75, s{S_CG}, {CGS}
    s_lshl_b32 s64, s{S_WAVE}, 13
    s_add_u32 s75, s75, s64
    s_add_u32 s75, s75, {hex(WS_UP)}
    s_add_u32 s76, s75, 4096
    v_and_b32 v20, 3, v1
    v_lshrrev_b32 v21, 2, v1
    v_lshlrev_b32 v21, 3, v21
    v_mul_u32_u24 v22, {XS}, v20
    s_lshl_b32 s64, s{S_WAVE}, 10
    s_add_u32 s65, s64, {XA}
    v_add3_u32 v{VXW}, v21, v22, s65
    v_mul_u32_u24 v22, {CBS}, v20
    s_add_u32 s65, s64, {CB0 + 512}
    v_add3_u32 v{VUW}, v21, v22, s65''')
def up_load(i): r = VU + 4 * i; return f'buffer_load_dwordx4 v[{r}:{r+3}], v{VL0}, {srd(R_WS)}, s{75 + i//4} offen offset:{(i & 3)*1024} sc1'
def up_loads(): return [up_load(i) for i in range(8)]
def up_chk(i):
    r = VU + 8 * i
    return [f'v_cmp_ne_u32 vcc, s{S_TAG}, v{r+3}', f'v_cmp_ne_u32 s[64:65], s{S_TAG}, v{r+7}', 's_or_b64 vcc, vcc, s[64:65]']
def up_retry(k):
    for i in range(4):
        L = k.lab('ur')
        for l in up_chk(i) + [f's_cbranch_vccz {L}', ';@maybe_begin', up_load(2 * i), up_load(2 * i + 1), ';@maybe_end', f'{L}:']: k(l)
def up_norm(i, t):
    r = VU + 4 * i; qp = lambda j: f'quad_perm:[{j},{j},{j},{j}] row_mask:0xf bank_mask:0xf'
    L = [f'v_and_b32 v{t+5}, 0xffff0000, v{r+2}', f'v_lshlrev_b32 v{t+4}, 16, v{r+2}', f'v_rcp_f32 v{t+5}, v{t+5}',
         f'v_lshlrev_b32 v{t}, 16, v{r}', f'v_and_b32 v{t+1}, 0xffff0000, v{r}', f'v_lshlrev_b32 v{t+2}, 16, v{r+1}', f'v_and_b32 v{t+3}, 0xffff0000, v{r+1}']
    L += [f'v_subrev_f32 v{t+j}, v{t+4}, v{t+j} {qp(j)}' for j in range(4)]
    L += [f'v_mul_f32 v{t+j}, v{t+5}, v{t+j} {qp(j)}' for j in range(4)]
    return L + [f'v_cvt_pk_bf16_f32 v{r+2}, v{t}, v{t+1}', f'v_cvt_pk_bf16_f32 v{r+3}, v{t+2}, v{t+3}']
def up_final(k):
    k('s_waitcnt vmcnt(0)')
    for i in range(4):
        L = k.lab('uf'); r = VU + 8 * i
        for l in up_chk(i) + ['s_mov_b32 s26, 0', f's_cbranch_vccz {L}_ok', ';@push', f'{L}:', up_load(2 * i), up_load(2 * i + 1)] + \
            ['s_add_u32 s26, s26, 1', 's_waitcnt vmcnt(0)'] + up_chk(i) + ['s_cmp_gt_u32 s26, 0x40000', f's_cbranch_scc1 {L}_ok', f's_cbranch_vccnz {L}', ';@pop', f'{L}_ok:']: k(l)
        k(f'ds_write2_b64 v{VXW}, v[{r}:{r+1}], v[{r+4}:{r+5}] offset0:{32*i} offset1:{32*i+16}')
        for l in zipl(up_norm(2 * i, 240), up_norm(2 * i + 1, 246)): k(l)
        k(f'ds_write2_b64 v{VUW}, v[{r+2}:{r+3}], v[{r+6}:{r+7}] offset0:{32*i} offset1:{32*i+16}')
def kgen(k0, ups):
    k = Buf()
    AR, AI, B, C = 32, 34, 36, 40
    E1, E8, E256, E2, E4, CC = 44, 48, 52, 56, 60, 64
    k(f'''v_lshlrev_b32 v30, 16, v{VDT}
    v_mul_f32 v30, {fl(LOG2E)}, v30
    v_exp_f32 v30, v30
    s_mul_i32 s64, s{S_WAVE}, {TBL}
    v_lshl_add_u32 v22, v1, 3, s64
    v_cvt_pk_bf16_f32 v30, v30, v30
    v_and_b32 v30, 0xffff0000, v30''')
    for i, d in enumerate((AR, AI, B, B + 2, C, C + 2)):
        k(f'v_lshlrev_b32 v{d}, 16, v{24+i}\nv_and_b32 v{d+1}, 0xffff0000, v{24+i}')
    k('v_mov_b32 v31, v30')
    for d in (AR, AI, B, B + 2): k(pk('mul', d, d, 30))
    for d, c in ((AR, LOG2E), (AI, 1 / (2 * math.pi))):
        k(f'v_mul_f32 v{d}, {fl(c)}, v{d}\nv_mul_f32 v{d+1}, {fl(c)}, v{d+1}')
    cmul(k, CC, C, B, 68)
    for E, s in ((E8, 8.0), (E1, 1.0), (E256, 256.0)):
        a = Buf(); b = Buf()
        for m, q in ((0, a), (1, b)):
            t = 72 + 4 * m
            if s == 1.0:
                q(f'v_exp_f32 v{t}, v{AR+m}\nv_fract_f32 v{t+1}, v{AI+m}')
            else:
                q(f'v_mul_f32 v{t}, {fl(s)}, v{AR+m}\nv_mul_f32 v{t+1}, {fl(s)}, v{AI+m}\nv_exp_f32 v{t}, v{t}\nv_fract_f32 v{t+1}, v{t+1}')
            q(f'v_cos_f32 v{t+2}, v{t+1}\nv_sin_f32 v{t+3}, v{t+1}\nv_mul_f32 v{E+m}, v{t}, v{t+2}\nv_mul_f32 v{E+2+m}, v{t}, v{t+3}')
        for l in zipl(a.L, b.L): k(l)
    n0 = len(k.L)
    wr = [0]
    def put(q, z, rows, base):
        t = 96 + 2 * (wr[0] % 8); wr[0] += 1
        q(f'v_cvt_pk_bf16_f32 v{t}, v{z}, v{z+1}\nv_cvt_pk_bf16_f32 v{t+1}, v{z+2}, v{z+3}')
        for r in rows: q(f'ds_write_b64 v22, v[{t}:{t+1}] offset:{base + r*528}')
    cq = Buf(); Z = 80
    cq('v_mov_b32 v112, 0x3f803f80\nv_mov_b32 v113, 0\nds_write_b64 v22, v[112:113] offset:16896')
    cq(f'v_mov_b32 v{Z}, v{E8}\nv_mov_b32 v{Z+1}, v{E8+1}\nv_sub_f32 v{Z+2}, 0, v{E8+2}\nv_sub_f32 v{Z+3}, 0, v{E8+3}')
    wr[0] = 0
    def putc(j):
        t = 96 + 2 * (j % 4)
        cq(f'v_cvt_pk_bf16_f32 v{t}, v{Z}, v{Z+1}\nv_cvt_pk_bf16_f32 v{t+1}, v{Z+2}, v{Z+3}\nds_write_b64 v22, v[{t}:{t+1}] offset:{16896 + j*528}')
    putc(1)
    for j in range(2, 32):
        t = 84
        cq(pk('mul', t, Z + 2, E8 + 2)); cq(pk('mul', t + 2, Z, E8 + 2))
        cq(pk('fma', Z, Z, E8, t)); cq(pk('fma', Z + 2, Z + 2, E8, t + 2, 'neg_lo:[0,0,1] neg_hi:[0,0,1]'))
        putc(j)
    rq = Buf(); Y, P = 88, 92; tt = 68
    cnt = [0]
    def putr(z, off):
        t = 104 + 2 * (cnt[0] % 4); cnt[0] += 1
        rq(f'v_cvt_pk_bf16_f32 v{t}, v{z}, v{z+1}\nv_cvt_pk_bf16_f32 v{t+1}, v{z+2}, v{z+3}')
        for r in rows_of(off): rq(f'ds_write_b64 v22, v[{t}:{t+1}] offset:{r*528}')
    putr(CC, 0)
    cmul(rq, Y, CC, E1, tt); putr(Y, 1)
    for o in range(2, 9): cmul(rq, Y, Y, E1, tt); putr(Y, o)
    cmul(rq, E2, E1, E1, tt); cmul(rq, E4, E2, E2, tt)
    cmul(rq, P, CC, E256, tt); putr(P, 256)
    cmul(rq, Y, P, E2, tt); putr(Y, 258)
    for o in (260, 262, 264): cmul(rq, Y, Y, E2, tt); putr(Y, o)
    for base in (512, 768):
        cmul(rq, P, P, E256, tt); putr(P, base)
        cmul(rq, Y, P, E4, tt); putr(Y, base + 4)
        cmul(rq, Y, P, E8, tt); putr(Y, base + 8)
    for base in (1024, 1280, 1536, 1792):
        cmul(rq, P, P, E256, tt); putr(P, base)
        cmul(rq, Y, P, E8, tt); putr(Y, base + 8)
    ch = k.L + zipl(cq.L, rq.L); n = len(ch); k = k0
    ins = {}
    for i, g in enumerate(ups): ins.setdefault(cfg.us0 + i * cfg.us, []).extend(g)
    if cfg.fine == 2:
        q = Buf(); stamp(q, 13); q('s_waitcnt vmcnt(0)'); stamp(q, 14); ins.setdefault(min(n, n * cfg.up // 100), []).extend(q.L)
    ins.setdefault(min(n, n * cfg.up // 100), []).extend(up_loads())
    if cfg.fine == 2:
        q = Buf(); q('s_waitcnt vmcnt(0)'); stamp(q, 15); ins.setdefault(min(n, n * cfg.up // 100), []).extend(q.L)
    if cfg.prof and not cfg.gs:
        q = Buf(); stamp(q, 6); ins.setdefault(n0, []).extend(q.L)
    for i in range(n + 1):
        for l in ins.get(i, []): k(l)
        if i < n: k(ch[i])
    stamp(k, 7)
    k(f'''v_and_b32 v23, 31, v1
    s_movk_i32 s65, 528
    v_mul_lo_u32 v23, v23, s65
    v_lshrrev_b32 v24, 5, v1
    v_lshl_add_u32 v23, v24, 4, v23
    v_add_u32 v23, s64, v23''')
    ACC = 144
    def rd(ks):
        a = 32 + 8 * (ks % 12)
        k(f'ds_read_b128 v[{a}:{a+3}], v23 offset:{ks*32}\nds_read_b128 v[{a+4}:{a+7}], v23 offset:{16896 + ks*32}')
    for ks in range(6): rd(ks)
    for ks in range(16):
        a = 32 + 8 * (ks % 12)
        c = '0' if ks == 0 else f'v[{ACC}:{ACC+15}]'
        k(f'v_mfma_f32_32x32x16_bf16 v[{ACC}:{ACC+15}], v[{a}:{a+3}], v[{a+4}:{a+7}], {c}')
        if ks + 6 < 16: rd(ks + 6)
def kwrite(k):
    A = 144
    k(f'''s_mul_i32 s74, s{S_WAVE}, {CBS}
    s_add_u32 s74, s74, {CB0}
    v_and_b32 v24, 31, v1
    v_lshrrev_b32 v25, 5, v1
    v_lshlrev_b32 v24, 4, v24
    v_sub_u32 v24, s74, v24
    v_lshlrev_b32 v26, 9, v25
    v_sub_u32 v27, v24, v26
    v_sub_u32 v28, v27, v26
    v_cmp_eq_u32 vcc, 0, v1
    v_lshlrev_b32 v26, 16, v{VDS}
    v_cndmask_b32 v26, 0, v26, vcc
    v_add_f32 v{A}, v{A}, v26
    v_and_b32 v26, 1, v1
    v_cmp_eq_u32 vcc, 1, v26''')
    def cv(d, a, b): k(f'v_cvt_pk_bf16_f32 v{d}, v{a}, v{b}')
    def w(addr, r, off): k(f'ds_write_b128 v{addr}, v[{r}:{r+3}] offset:{off}')
    V = [A + i for i in range(8)] + [A + 15]
    for i in range(4): cv(32 + i, V[7 - 2 * i], V[6 - 2 * i])
    w(27, 32, KC0 + 4080)
    for i in range(4): cv(36 + i, V[8 - 2 * i], V[7 - 2 * i])
    w(27, 36, KC1 + 4080)
    W0, W4, W8 = A + 8, A + 9, A + 10
    cv(40, W8, W8); cv(41, W4, W4); cv(42, W4, W0); cv(43, W0, W0)
    w(27, 40, KC0 + 4080 - 1024)
    k('v_mov_b32 v44, v40'); cv(45, W8, W4); k('v_mov_b32 v46, v41\nv_mov_b32 v47, v43')
    w(27, 44, KC1 + 4080 - 1024)
    for q, (X0, X8) in enumerate(((A + 11, A + 12), (A + 13, A + 14))):
        r = 48 + 12 * q
        k(f'v_cndmask_b32 v{r+8}, v{X0}, v{X8}, vcc')
        cv(r, X8, X8); cv(r + 1, X8, r + 8); cv(r + 2, X0, X0); k(f'v_mov_b32 v{r+3}, v{r+2}')
        w(28, r, KC0 + 4080 - 2048 - 512 * q)
        k(f'v_mov_b32 v{r+4}, v{r}\nv_mov_b32 v{r+5}, v{r}'); cv(r + 6, r + 8, X0); k(f'v_mov_b32 v{r+7}, v{r+2}')
        w(28, r + 4, KC1 + 4080 - 2048 - 512 * q)
    k(f'''v_mov_b32 v72, 0
    v_mov_b32 v73, 0
    v_lshl_add_u32 v74, v1, 3, s74
    ds_write_b64 v74, v[72:73]
    v_cvt_pk_bf16_f32 v75, v{A}, v72
    v_cmp_eq_u32 vcc, 0, v1
    v_lshl_add_u32 v74, v1, 2, s74
    v_cndmask_b32 v75, v72, v75, vcc
    s_mov_b64 exec, 0xffff
    ds_write_b32 v74, v72 offset:{KC0 + 4096}
    ds_write_b32 v74, v75 offset:{KC1 + 4096}
    s_mov_b64 exec, -1''')
def conv(k):
    NA = 24
    k(f"""v_and_b32 v24, 15, v1
    v_lshrrev_b32 v25, 4, v1
    v_lshlrev_b32 v26, 5, v24
    v_lshl_add_u32 v{VXR}, v25, 3, v26
    v_lshl_add_u32 v26, v25, 4, v26
    v_add_u32 v26, s74, v26
    v_lshlrev_b32 v27, 3, v25
    v_sub_u32 v27, v27, v24
    v_add_u32 v27, 2031, v27
    v_and_b32 v28, 1, v27
    v_mul_u32_u24 v28, {4160 + 2}, v28
    v_lshl_add_u32 v27, v27, 1, v28
    v_add_u32 v27, s74, v27
    v_mul_u32_u24 v{VHS}, {HTB}, v25
    v_lshl_add_u32 v{VHS}, v24, 4, v{VHS}
    v_lshlrev_b32 v{VTR}, 6, v25
    v_and_b32 v24, 3, v1
    v_lshl_add_u32 v{VTR}, v24, 3, v{VTR}
    v_bfe_u32 v24, v1, 2, 1
    v_mul_u32_u24 v24, {1024 + 32}, v24
    v_bfe_u32 v25, v1, 3, 1
    v_mul_u32_u24 v25, {2048 + 128}, v25
    v_add3_u32 v{VTR}, v{VTR}, v24, v25
    s_lshl_b32 s64, s{S_WAVE}, 8
    s_add_u32 s64, s64, {OST}
    v_add_u32 v{VTR}, s64, v{VTR}
    s_and_b32 s64, s{S_WAVE}, 1
    s_mul_i32 s64, s64, {1024 + 32}
    s_lshr_b32 s65, s{S_WAVE}, 1
    s_mul_i32 s65, s65, {2048 + 128}
    s_add_u32 s64, s64, s65
    s_add_u32 s64, s64, {OST}
    v_add_u32 v{VOW}, s64, v{VXR}
    s_mul_i32 s64, s{S_WAVE}, {XS}
    s_add_u32 s64, s64, {XA}
    v_add_u32 v{VXR}, s64, v{VXR}
    s_mul_i32 s75, s{S_WAVE}, {4*HTB}
    s_lshl_b32 s64, s{S_CG}, 8
    s_add_u32 s75, s75, s64
    s_add_u32 s75, s75, {hex(WS_HP)}
    s_mul_i32 s76, s{S_WAVE}, 160
    s_add_u32 s76, s76, s{S_CG}
    s_lshl_b32 s76, s76, {cfg.fh}
    s_add_u32 s76, s76, {hex(WS_FLAGH)}""")
    for i in range(4): k(f'v_add_u32 v{28+i}, {KC0 - 1024*(i+1) + 64}, v27')
    k('s_waitcnt lgkmcnt(0)\ns_barrier')
    stamp(k, 3)
    def rdA(e):
        r = 32 + 4 * (e % NA); i = e // 16; o = (15 - e % 16) * 16
        return [f'ds_read2_b32 v[{r}:{r+1}], v{28+i} offset0:{o} offset1:{o+1}', f'ds_read2_b32 v[{r+2}:{r+3}], v{28+i} offset0:{o+2} offset1:{o+3}']
    def rdB(q): return [f'ds_read_b128 a[{4*(q+7)}:{4*(q+7)+3}], v26 offset:{2*(240+32*q)}']
    mf = []
    for e in range(64):
        for b in range(8):
            if e <= 8 * b + 7: mf.append((e, b))
    n = len(mf); idx_of = {x: i for i, x in enumerate(mf)}
    loads = []; seenA = set(); seenB = set()
    for idx, (e, b) in enumerate(mf):
        if e not in seenA: seenA.add(e); loads += [(l, ('A', e)) for l in rdA(e)]
        q = 8 * b - e
        if q not in seenB: seenB.add(q); loads += [(l, ('B', q)) for l in rdB(q)]
    lastuse = {}
    for idx, (e, b) in enumerate(mf): lastuse[e] = idx
    li = 0
    def can(idx):
        l, (t, v) = loads[li]
        return t == 'B' or v < NA or lastuse[v - NA] < idx
    for _ in range(12): k(loads[li][0]); li += 1
    k(f"""s_or_b32 s64, s2, s{S_WAVE}
    s_cselect_b32 s64, {hex(OOB)}, 0
    v_add_u32 v24, s64, v{VF0}
    buffer_store_dword v{VTAG}, v24, {srd(R_WS)}, 0 offen sc1""")
    ex = {}; vm = set()
    def put(i, L): ex.setdefault(i, []).extend(L)
    def putvm(i, L):
        i |= 1
        while i in vm: i += 2
        vm.add(i); put(i, L); return i
    def xun(b): return [f'v_lshlrev_b32 v{VXT+4*(b&1)}, 16, v{VXP+2*b}', f'v_and_b32 v{VXT+4*(b&1)+1}, 0xffff0000, v{VXP+2*b}',
                        f'v_lshlrev_b32 v{VXT+4*(b&1)+2}, 16, v{VXP+2*b+1}', f'v_and_b32 v{VXT+4*(b&1)+3}, 0xffff0000, v{VXP+2*b+1}']
    def xadd(b): return [f'v_add_f32 v{128+4*b+i}, v{128+4*b+i}, v{VXT+4*(b&1)+i}' for i in range(4)]
    def wout(b):
        r = VCV + 2 * (b & 1); a = 128 + 4 * b
        return [f'v_cvt_pk_bf16_f32 v{r}, v{a}, v{a+1}', f'v_cvt_pk_bf16_f32 v{r+1}, v{a+2}, v{a+3}', f';@tag o{b}',
                f'ds_write_b64 v{VOW}, v[{r}:{r+1}] offset:{(b&1)*512 + ((b>>1)&1)*OSB}']
    for b in range(8): put(65 + 2 * ((b + 1) % 8), [f'ds_read_b64 v[{VXP+2*b}:{VXP+2*b+1}], v{VXR} offset:{b*512}'])
    i7 = idx_of[(11, 7)]
    L = xun(7); put(i7 - 1, L[:2]); put(i7 + 1, L[2:]); L = xadd(7); put(i7 + 4, L[:2]); put(i7 + 5, L[2:])
    bars = []; tail = []
    for jj in range(4):
        b0, b1 = 2 * jj, 2 * jj + 1
        s1 = idx_of[(16 * jj + 15, b1)] + 1
        s0 = max(idx_of[(16 * jj + 7, b0)] + 3, 96)
        L = xun(b0) + xadd(b0) + wout(b0)
        if jj == 3: s0 -= 1
        for i in range(0, 10, 2): put(s0 + i // 2, L[i:i + 2])
        put(s0 + 5, L[10:])
        o = VTRD + 4 * (jj & 1)
        trr = [f'ds_read_b64_tr_b16 v[{o+2*q}:{o+2*q+1}], v{VTR} offset:{(jj&1)*OSB + 32*q}' for q in range(2)]
        st = [f';@tag h{jj}', f'buffer_store_dwordx4 v[{o}:{o+3}], v{VHS}, {srd(R_WS)}, s75 offen sc1', f's_add_u32 s75, s75, {16*HTB}']
        fl_ = [f';@waitvm h{jj}'] + flag_store(76) + [f's_add_u32 s76, s76, {4*160 << cfg.fh}']
        if jj < 3:
            L = xun(b1); put(s1 - 3, L[:2]); put(s1 - 2, L[2:])
            L = xadd(b1); put(s1 + 2, L[:2]); put(s1 + 3, L[2:])
            put(s1 + 4, wout(b1))
            put(s1 + 7, [f';@waitlg o{b1}', 's_barrier'] + trr); bars.append(s1 + 7)
            i = putvm(s1 + 11, st)
            if i + cfg.hf < n - 1: putvm(i + cfg.hf, fl_)
            else: tail.append(fl_)
        else:
            last = wout(b1) + [f';@waitlg o{b1}', 's_barrier'] + trr + st; tail.append(fl_)
    for u, l in enumerate(p_pre.act_pre()): putvm(cfg.ps0 + u * cfg.ps, [l])
    putvm(cfg.wchk - 30, p_pre.flag_load(S_FW, VFW))
    put(cfg.wchk, p_pre.flag_wait(k, S_FW, VFW))
    dg = [g for R in range(6) for g in groups(p_pre.dma_round(R))]
    for j, g in enumerate(dg):
        i = putvm(cfg.wchk + 1 + j * (cfg.dchk - cfg.wchk - 2) // len(dg), g)
        assert j < 16 or i > bars[0]
    putvm(cfg.dchk - 30, p_pre.flag_load(S_FD, VFD))
    put(cfg.dchk, p_pre.flag_wait(k, S_FD, VFD))
    wg = []
    for l in p_pre.wd_loads(0, cfg.nc1):
        if l.startswith('buffer'): wg.append([l])
        else: wg[-1].append(l)
    for j, g in enumerate(wg):
        i = putvm(cfg.dchk + 1 + j * (n - 3 - cfg.dchk) // len(wg), g)
        assert i < n and mf[i][0] > j, (i, j)
    assert max(ex) < n, max(ex)
    started = set()
    for idx, (e, b) in enumerate(mf):
        r = 32 + 4 * (e % NA); q = 8 * b - e; acc = 128 + 4 * b
        c = f'v[{acc}:{acc+3}]' if b in started else '0'
        started.add(b)
        k(f'v_mfma_f32_16x16x32_bf16 v[{acc}:{acc+3}], v[{r}:{r+3}], a[{4*(q+7)}:{4*(q+7)+3}], {c}')
        for l in ex.get(idx, []): k(l)
        nl = 1 if (idx % 8) else 2
        if idx >= 64: nl = 1 if idx % 2 == 0 else 0
        if idx < 64 and idx % 4 == 0: nl = 2
        for _ in range(nl):
            if li < len(loads) and can(idx + 1): k(loads[li][0]); li += 1
    assert li == len(loads), (li, len(loads))
    for l in last: k(l)
    stamp(k, 4)
    for R in range(6, 9):
        for l in p_pre.dma_round(R): k(l)
    for g in tail:
        for l in g: k(l)
    stamp(k, 5)
    for l in p_pre.wd_loads(cfg.nc1, cfg.nc1 + cfg.nc2): k(l)
def conv_wg(k):
    conv_loads(k)
    cfg.fine_n = 10 + (cfg.pf + 1 if cfg.pf else 0)
    ups = ln1(k)
    stamp(k, 1)
    kgen(k, ups)
    k('s_barrier')
    stamp(k, 2)
    up_retry(k)
    if cfg.fine: stamp(k, 11)
    p_pre.ids(k)
    kwrite(k)
    stamp(k, 8)
    up_final(k)
    if cfg.fine: stamp(k, 12)
    conv(k)
```

```python
from common import *
from p_pro import flag_store
import p_pre, re
from p_pre import dma_round, wreg, NPRE
RING = 144
SCR = RING * 1024
VH = 96
ACC = 32
VL1, VL2, VPW, VCOR = 4, 5, 6, 7
VK1, VK3, VD2 = (9, 12), (10, 13), (11, 14)
VSA, VSB, VSW, VSR, VSG, VGA = 9, 10, 11, 12, 13, 14
VGR = 16
VRS, VO1, VO2, VPR = 16, 17, 18, 19
VAA, VAO, VSF, VSD = 28, 29, 30, 31
VS2 = 80
BM = 32
ACC2, VT, VPB = 152, 232, 48
RBS = [80 + 4 * i for i in range(18)] + [32 + 4 * i for i in range(4)]; NR = len(RBS)
S_GL, S_ONE, S_GS, S_RS, S_OO = 69, 70, 71, 74, 67
PW = 15360
MF = 'v_mfma_f32_16x16x32_bf16'
def acc(u, m, t): r = ACC + 16 * (u % 4) + 8 * m + 4 * t; return r
def epi(u):
    q = Buf(); A = ACC + 16 * (u % 4)
    for t in range(2):
        T_ = 20 + 4 * t; G = acc(u, 0, t); U = acc(u, 1, t); E = range(4)
        for j in E: q(f'v_mul_f32 v{T_+j}, v{G+j}, v{G+j}')
        for j in E: q(f'v_fma_f32 v{T_+j}, v{T_+j}, v{VK3[t]}, v{VK1[t]}')
        for j in E: q(f'v_mul_f32 v{T_+j}, v{G+j}, v{T_+j}')
        for j in E: q(f'v_exp_f32 v{T_+j}, v{T_+j}\nv_mul_f32 v{U+j}, v{G+j}, v{U+j}')
        for j in E: q(f'v_fma_f32 v{T_+j}, v{T_+j}, v{VD2[t]}, v{VD2[t]}')
        for j in E: q(f'v_rcp_f32 v{T_+j}, v{T_+j}')
        for j in E: q(f'v_mul_f32 v{U+j}, v{U+j}, v{T_+j}')
        for j in range(2): q(f'v_cvt_pk_bf16_f32 v{A+2*t+j}, v{U+2*j}, v{U+2*j+1}')
    q(f'v_permlane16_swap_b32 v{A}, v{A+2}\nv_permlane16_swap_b32 v{A+1}, v{A+3}\nv_min_u32 v{A+3}, -2, v{A+3}')
    q(f';@tag e{u}\n' + p_pre.act_store(u, A))
    return q.L
def s2_dots():
    q = Buf()
    for j in range(3):
        for r in range(2):
            for e in range(2):
                x = VS2 + 4 * j + 2 * e + r; first = (j == 0 and r == 0)
                q(f'v_dot2_f32_bf16 v{20+2*e}, v{x}, s{S_ONE}, ' + ('0' if first else f'v{20+2*e}'))
                q(f'v_dot2_f32_bf16 v{21+2*e}, v{x}, v{x}, ' + ('0' if first else f'v{21+2*e}'))
    return q.L
def s2_red():
    q = Buf()
    q(f'''v_permlane16_swap_b32 v20, v21
    v_permlane16_swap_b32 v22, v23
    v_add_f32 v20, v20, v21
    v_add_f32 v22, v22, v23
    v_permlane32_swap_b32 v20, v22
    v_add_f32 v20, v20, v22
    v_add_f32 v20, v20, v20 row_ror:4
    v_add_f32 v20, v20, v20 row_ror:8
    ;@tag s2w
    ds_write_b32 v{VSW}, v20''')
    return q.L
def s2_fin():
    q = Buf()
    q(f'''ds_read2_b64 v[20:23], v{VSR} offset0:0 offset1:8
    ds_read2_b64 v[24:27], v{VSR} offset0:16 offset1:24
    v_add_f32 v20, v20, v22
    v_add_f32 v21, v21, v23
    v_add_f32 v24, v24, v26
    v_add_f32 v25, v25, v27
    v_add_f32 v20, v20, v24
    v_add_f32 v21, v21, v25
    v_mul_f32 v20, {fl(1/D)}, v20
    v_mul_f32 v21, {fl(1/D)}, v21
    v_fma_f32 v21, -v20, v20, v21
    v_max_f32 v21, 0, v21
    v_cvt_pk_bf16_f32 v21, v21, v21
    v_and_b32 v21, 0xffff0000, v21
    v_add_f32 v21, {fl(1e-5)}, v21
    v_cvt_pk_bf16_f32 v21, v21, v21
    v_and_b32 v21, 0xffff0000, v21
    v_sqrt_f32 v21, v21
    v_mov_b32 v23, s{S_TAG}
    v_cvt_pk_bf16_f32 v22, v20, v21
    buffer_store_dwordx2 v[22:23], v{VSG}, {srd(R_WS)}, s{S_GS} offen sc1''')
    return q.L
def gr_load(): return [f'buffer_load_dwordx4 v[{VGR}:{VGR+3}], v{VGA}, {srd(R_WS)}, s{S_GL} offen sc1']
def gr_wait(k):
    L = k.lab('gr'); q = Buf()
    chk = f'''v_cmp_ne_u32 vcc, s{S_TAG}, v{VGR+1}
    v_cmp_ne_u32 s[72:73], s{S_TAG}, v{VGR+3}
    s_or_b64 vcc, vcc, s[72:73]'''
    q(f'''{chk}
    s_mov_b32 s65, 0
    s_cbranch_vccz {L}_ok
    ;@push
    {L}:
    {gr_load()[0]}
    s_add_u32 s65, s65, 1
    s_waitcnt vmcnt(0)
    {chk}
    s_cmp_gt_u32 s65, 0x40000
    s_cbranch_scc1 {L}_ok
    s_cbranch_vccnz {L}
    ;@pop
    {L}_ok:''')
    for t in range(2):
        q(f'''v_and_b32 v{20+t}, 0xffff, v{VGR+2*t}
        v_xor_b32 v{20+t}, 0x8000, v{20+t}
        v_lshl_or_b32 v{20+t}, v{20+t}, 16, v{20+t}
        v_accvgpr_write_b32 a{BM+4*t}, v{20+t}
        v_accvgpr_write_b32 a{BM+4*t+1}, v{20+t}''')
    return q.L
def gr_const():
    q = Buf(); c = 2 * LOG2E * math.sqrt(2 / math.pi)
    for t in range(2):
        q(f'''v_and_b32 v{VD2[t]}, 0xffff0000, v{VGR+2*t}
        v_rcp_f32 v{VK3[t]}, v{VD2[t]}
        v_mul_f32 v{VD2[t]}, v{VD2[t]}, v{VD2[t]}
        v_mul_f32 v{VK1[t]}, {fl(-c)}, v{VK3[t]}
        v_mul_f32 v{VK3[t]}, v{VK3[t]}, v{VK3[t]}
        v_mul_f32 v{VK3[t]}, {fl(0.044715)}, v{VK3[t]}
        v_mul_f32 v{VK3[t]}, v{VK3[t]}, v{VK1[t]}''')
    return q.L
def hload(j): return f'buffer_load_dwordx4 v[{VH+4*j}:{VH+4*j+3}], v{VL0}, {srd(R_WS)}, s{S_HG + j//4} offen offset:{(j%4)*1024} sc1'
def setup(k):
    k(f'''v_min_u32 v{VSF}, 39, v1
    s_mul_i32 s25, s{S_WAVE}, 40
    s_mul_i32 s64, s{S_RB}, 160
    s_add_u32 s25, s25, s64
    s_lshl_b32 s25, s25, {cfg.fh}
    v_lshlrev_b32 v{VSF}, {cfg.fh}, v{VSF}
    s_add_u32 s25, s25, {hex(WS_FLAGH)}''')
    for l in p_pre.flag_load(25, VSF, VSD): k(l)
    k(f'''v_add_u32 v{VL1}, 0x10000, v{VL0}
    v_add_u32 v{VL2}, 0x20000, v{VL0}
    v_and_b32 v20, 15, v1
    v_lshrrev_b32 v21, 4, v1
    v_lshlrev_b32 v{VGA}, 4, v20
    v_lshlrev_b32 v{VCOR}, 7, v21
    v_lshl_add_u32 v{VCOR}, v20, 2, v{VCOR}
    v_and_b32 v22, 1, v21
    v_lshrrev_b32 v23, 1, v21
    v_mul_u32_u24 v{VAA}, 3584, v23
    v_lshl_add_u32 v{VAA}, v20, 5, v{VAA}
    v_lshl_add_u32 v{VAA}, v22, 4, v{VAA}
    v_lshl_add_u32 v{VAO}, v23, 30, v{VAA}
    v_lshrrev_b32 v22, 2, v1
    v_and_b32 v23, 3, v1
    v_lshlrev_b32 v{VSA}, 8, v22
    v_lshl_add_u32 v{VSA}, v23, 4, v{VSA}
    v_lshrrev_b32 v22, 5, v1
    v_lshl_add_u32 v{VSB}, v22, 30, v{VSA}
    v_and_b32 v{VSG}, 7, v1
    v_lshlrev_b32 v{VSG}, 3, v{VSG}
    v_add_u32 v{VSR}, {SCR}, v{VSG}
    v_cmp_lt_u32 vcc, 7, v1
    v_mov_b32 v22, {hex(OOB)}
    v_cndmask_b32 v{VSG}, v{VSG}, v22, vcc
    s_lshl_b32 s64, s{S_WAVE}, 6
    s_add_u32 s64, s64, {SCR}
    v_lshl_add_u32 v{VSW}, v23, 4, s64
    v_lshl_add_u32 v{VSW}, v21, 2, v{VSW}
    v_mov_b32 v22, 0
    v_accvgpr_write_b32 a{BM+2}, v22
    v_accvgpr_write_b32 a{BM+3}, v22
    v_accvgpr_write_b32 a{BM+6}, v22
    v_accvgpr_write_b32 a{BM+7}, v22
    s_lshl_b32 s64, s{S_RB}, 10
    s_lshl_b32 s65, s{S_WAVE}, 8
    s_add_u32 s{S_GL}, s64, s65
    s_add_u32 s{S_GL}, s{S_GL}, {hex(WS_ST2)}
    s_lshl_b32 s65, s{S_C}, 6
    s_add_u32 s{S_GS}, s64, s65
    s_add_u32 s{S_GS}, s{S_GS}, {hex(WS_ST2)}
    s_cmp_eq_u32 s{S_WAVE}, 0
    s_cselect_b32 s{S_GS}, s{S_GS}, {hex(OOB)}
    s_lshl_b32 s64, s{S_RB}, 2
    s_lshr_b32 s65, s{S_C}, 2
    s_add_u32 s65, s65, s64
    s_mul_i32 s75, s65, {HTB}
    s_and_b32 s65, s{S_C}, 3
    s_lshl_b32 s65, s65, 6
    s_add_u32 s75, s75, s65
    s_mul_i32 s65, s{S_WAVE}, {40*256}
    s_add_u32 s75, s75, s65
    s_add_u32 s75, s75, {hex(WS_HP)}
    s_add_u32 s76, s75, 4096
    s_add_u32 s77, s75, 8192
    s_add_u32 s64, s64, s{S_WAVE}
    s_mul_i32 s64, s64, {HTB}
    s_add_u32 s64, s64, {hex(WS_HP)}
    s_mov_b32 s{S_ONE}, 0x3f803f80
    s_and_b32 s20, s{S_C}, 7''')
    for g in range(10):
        k(f's_add_u32 s65, s20, {g}\ns_cmp_ge_u32 s65, 10\ns_cselect_b32 s21, 10, 0\ns_sub_u32 s65, s65, s21\ns_lshl_b32 s65, s65, 12\ns_add_u32 s{S_HG+g}, s65, s64')
    k(f'''s_mul_i32 s20, s{S_WAVE}, {27*512}
    s_add_u32 s21, s{S_WAVE}, s{S_CB}
    s_lshl_b32 s22, s{S_TB}, 2''')
    for b in range(4):
        k(f'''s_add_u32 s64, s21, {b+1}
        s_and_b32 s64, s64, 3
        s_add_u32 s64, s64, s22
        s_mul_i32 s65, s64, {AST}
        s_add_u32 s{S_AO+2*b}, s65, s20
        s_add_u32 s{S_AO+2*b+1}, s{S_AO+2*b}, {14*512}''')
    k(f'''s_mul_i32 s{S_OO}, s64, {16*1280}
    s_mul_i32 s65, s{S_CB}, 160
    s_add_u32 s{S_OO}, s{S_OO}, s65
    s_lshr_b32 s65, s64, 1
    s_mul_i32 s{S_RS}, s65, {HTB}
    s_and_b32 s64, s64, 1
    s_lshl_b32 s64, s64, 3
    s_add_u32 s{S_RS}, s{S_RS}, s64
    s_mul_i32 s65, s{S_CB}, {20*256}
    s_add_u32 s{S_RS}, s{S_RS}, s65
    s_add_u32 s{S_RS}, s{S_RS}, {hex(WS_HP)}''')
def g2_addr():
    q = Buf()
    q(f'''v_and_b32 v{VO2}, 15, v1
    v_lshrrev_b32 v{VPR}, 4, v1
    v_lshlrev_b32 v{VRS}, 8, v{VPR}
    v_lshl_add_u32 v{VRS}, v{VO2}, 4, v{VRS}
    v_mul_u32_u24 v{VO2}, 1280, v{VO2}
    v_bfe_u32 v{VSF}, v1, 4, 1
    v_lshl_add_u32 v{VO1}, v{VSF}, 5, v{VO2}
    v_lshrrev_b32 v{VSF}, 5, v1
    v_lshl_add_u32 v{VO1}, v{VSF}, 4, v{VO1}
    v_lshl_add_u32 v{VO2}, v{VPR}, 3, v{VO2}
    s_mul_i32 s64, s{S_WAVE}, {PW}
    v_add_u32 v{VPR}, s64, v{VL0}''')
    return q.L
def relabel(L, sfx):
    labs = [l[:-1] for l in L if l.endswith(':')]
    out = []
    for l in L:
        for a in labs: l = re.sub(r'\b' + a + r'\b', a + sfx, l)
        out.append(l)
    return out
def gemms(k):
    setup(k)
    stamp(k, 10)
    for l in p_pre.flag_wait(k, 25, VSF, VSD): k(l)
    k('s_waitcnt vmcnt(0)\ns_barrier')
    stamp(k, 11); lstamp(k, -1)
    s2l = [f'buffer_load_dwordx4 v[{VS2+4*j}:{VS2+4*j+3}], v{VSB if j == 2 else VSA}, {srd(R_WS)}, s{75+j} offen sc1' for j in range(3)]
    H0 = cfg.h0
    for l in [hload(j) for j in range(4)] + s2l + [hload(j) for j in range(4, H0)]: k(l)
    blks = [(u, kp, m) for kp in range(10) for u in range(3) for m in range(2)] + [(u, 10, 0) for u in range(3)]
    for u in range(3, 7): blks += [(u, kp, m) for kp in range(10) for m in range(2)] + [(u, 10, 0)]
    nb = len(blks); N1 = 4 * nb; U6 = N1 - 84
    def frs(b):
        u, kp, m = blks[b]
        return (41 * u + 4 * kp + m, 41 * u + 4 * kp + 2 + m) if kp < 10 else (41 * u + 40, 41 * u + 40)
    cor = [0]
    def rdA(b, e):
        u, kp, m = blks[b]; f = frs(b)[e]; s = f % RING; r = 4 * ((2 * b + e) % 8); o = []
        if kp < 10: o = [f';@tag b{b}', f'ds_read_b128 a[{r}:{r+3}], v{(VL0, VL1, VL2)[s // 64]} offset:{(s % 64)*1024}']
        else:
            if e == 0: o.append(f'v_add_u32 v{VCOR}, {hex((s * 1024 - cor[0]) & 0xffffffff)}, v{VCOR}'); cor[0] = s * 1024
            o += [f';@tag b{b}', f'ds_read2_b32 a[{r}:{r+1}], v{VCOR} offset0:{128*e} offset1:{128*e+16}']
        return o
    def mf1(b):
        u, kp, m = blks[b]; a = [4 * ((2 * b + e) % 8) for e in range(2)]; o = []
        A = lambda e: f'a[{a[e]}:{a[e]+3}]'
        R4 = lambda r: f'v[{r}:{r+3}]'
        if kp < 10:
            for t, e in ((0, 0), (0, 1), (1, 1), (1, 0)):
                c = acc(u, m, t); first = kp == 0 and e == t
                o.append(f'{MF} {R4(c)}, {A(e)}, {R4(VH + 16*kp + 8*e + 4*t)}, ' + ('0' if first else R4(c)))
        else:
            for e, t in ((0, 0), (0, 1), (1, 1), (1, 0)):
                c = acc(u, e, t); o.append(f'{MF} {R4(c)}, {A(e)}, a[{BM+4*t}:{BM+4*t+3}], {R4(c)}')
        return o
    P1 = 5
    afr = [(jj, b, p) for jj in range(P1) for b in range(4) for p in range(2)] + [(jj, b, p) for b in range(4) for jj in range(P1, 7) for p in range(2)]
    g2 = []
    for i in range(0, 8 * P1, 2):
        for j in range(5):
            for e in ((0, 1) if j % 2 == 0 else (1, 0)): g2.append((i + e, j))
    nq = 2 * (7 - P1)
    for i in range(8 * P1, 56, nq):
        for j in range(5):
            for e in (range(nq) if j % 2 == 0 else reversed(range(nq))): g2.append((i + e, j))
    N2 = len(g2); n = N1 + N2; PH2 = N1 + 40 * P1
    fu = {}; lu = {}
    for i, (f, j) in enumerate(g2): fu.setdefault(f, N1 + i); lu[f] = N1 + i
    def rb(i): r = RBS[i % NR]; return f'v[{r}:{r+3}]'
    def ald(i):
        jj, b, p = afr[i]
        return f'buffer_load_dwordx4 {rb(i)}, v{VAO if (jj, p) == (6, 1) else VAA}, {srd(R_B)}, s{S_AO+2*b+p} offen offset:{jj*512} sc1'
    S = Stream(n + 8, [1.0 if (i < N1 - 12 and i % 2 == 0) else 2.0 for i in range(n + 8)])
    pre = [[] for _ in range(n)]
    def swaps(kp):
        o = []
        for e in range(2):
            b = VH + 16 * kp + 8 * e
            o.append([f'v_swap_b32 v{b+2}, v{b+4}']); o.append([f'v_swap_b32 v{b+3}, v{b+5}'])
        return o
    for kp in range(1, 10):
        for i, g in enumerate(swaps(kp)): S.put(24 * kp - 9 + 2 * i, g)
    jobs = []
    def chain(L, rel, dl, keep=False, nm=''):
        G = []
        for g in groups(L):
            if G and not any(l.startswith('buffer_') for l in g): G[-1] += g
            else: G.append(g)
        assert len(G) == len(rel) == len(dl), (len(G), len(rel))
        rel = list(rel); dl = list(dl)
        for i in range(1, len(G)): rel[i] = max(rel[i], rel[i - 1])
        for i in range(len(G) - 2, -1, -1): dl[i] = min(dl[i], dl[i + 1])
        for g, a, b in zip(G, rel, dl): jobs.append([a, b, g, keep, nm])
    chain([hload(j) for j in range(H0, 40)], [1] * (40 - H0), [max(24 * (j // 4) - 9 - cfg.lh, (j - H0) * 4 + 4) for j in range(H0, 40)], nm='h')
    def bar(i, wait=None, lg=None):
        S.put(i, ([f';@waitvm r{wait}'] if wait is not None else []) + ([f';@waitlg {lg}'] if lg else []) + ['s_barrier'])
    S.put(11, s2_dots())
    S.spread(s2_red(), 12, 30)
    bar(31, lg='s2w')
    fin = s2_fin()
    S.put(32, fin[:1]); S.put(33, fin[1:2])
    S.spread(fin[2:-1], 38, 64)
    chain(fin[-1:], [64], [69], nm='st')
    chain(gr_load(), [195], [201], nm='gr')
    pre[240] += gr_wait(k)
    S.spread(gr_const(), 240, 252)
    E = [int(x) for x in cfg.ep.split(',')]
    lo = [252, 252, 252, 338, 422, 506, N1 + 2]; hi = [334, 418, 502, n, n, n, n]
    est = {u: min(E[u + 1], hi[u]) for u in range(7)}
    est[4] = max(est[4], cfg.e4)
    for u in range(7): chain(epi(u)[-2:], [est[u]], [est[u] + 5], True, f'e{u}')
    def dl(rel, use, lat):
        d = use - lat
        for u in range(7):
            if est[u] <= d and est[u] + cfg.sx > use and est[u] - 1 >= rel + 4: d = min(d, est[u] - 1)
        return max(d, rel)
    B = [int(x.split(':')[0]) for x in cfg.bars.split(',')]
    use = {}; rd = {}
    for b in range(nb):
        for f in frs(b): use[f] = 4 * b; rd[f] = 4 * (b - 3)
    order = '9,12,10'.split(',') + [x for x in cfg.xo.split(',') if cfg.lwd or x[0] != 'x']
    waits = {int(x.split(':')[0]): x.split(':')[1] for x in cfg.bars.split(',') if ':' in x}; rel = []; dd = []; L = []
    for s in B: bar(s, waits.get(s))
    rs = {q: N1 + 56 + 3 * i for i, q in enumerate(q for g in p_pre.LATE for q in g)}
    for x in order:
        R = int(x[1:]) + 18 if x[0] == 'x' else int(x)
        fr = min(s for s in B if all(use.get(f, -1) < s for f in range(16 * (R - 9), 16 * (R - 8))))
        if x[0] == 'x':
            L += p_pre.wd_dma(R - 18); ry = rs[p_pre.LATE[R - 18][0]]
        else:
            L += dma_round(R)
            ry = min(s for s in waits if order.index(waits[s]) >= order.index(x))
            assert all(rd[f] > ry for f in range(16 * R, 16 * R + 16) if f in rd), R
        rel += [fr + 1] * 4; dd += [dl(fr + 1, ry, cfg.lw)] * 4
    chain(L, rel, dd, True, nm='w')
    assert B[-1] < U6 and all(use[f] < B[-1] for f in use if f % RING < 60)
    rel = []
    for i in range(56):
        if i < 4: s = est[3] + 8
        elif i < 18: s = U6 + 8 * ((i - 4) // 4 + 1)
        elif i < NR: s = est[4] + 8
        else: s = lu[i - NR] + 1
        rel.append(max(s, min(est[afr[i][0]] + cfg.vis, fu[i] - cfg.la - 10)))
    for i in range(56): chain([ald(i)], [rel[i]], [dl(rel[i], fu[i] - 2, cfg.la)], True, f'a{i}')
    q0 = cfg.nc1 + cfg.nc2
    wfu = {}
    for i, (f, j) in enumerate(g2): jj, b, p = afr[f]; wfu.setdefault(5 * (2 * jj + p) + j, N1 + i)
    qe = NPRE if cfg.lwd else 70
    rel = [cfg.wd0 if q < NPRE else N1 + 2 if q < NPRE + 10 else N1 + 42 for q in range(q0, qe)]
    if q0 < qe: chain(p_pre.wd_loads(q0, qe), rel, [dl(r, wfu[q], cfg.ld) for q, r in zip(range(q0, qe), rel)], True, 'd')
    if cfg.lwd:
        S.put(N1 + 50, [f'v_add_u32 v{VPW}, s{S_W12}, v{VL0}'])
        for g in range(4):
            for p, q in enumerate(p_pre.LATE[g]): S.put(rs[q], [f';@waitvm x{g}', ';@tag lw', f'ds_read_b128 {wreg(q)}, v{VPW} offset:{g*16384 + p*1024}'])
        bar(cfg.lb, lg='lw')
    VRE = 64 if cfg.rdot else VPB
    chain([f'buffer_load_dwordx2 v[{VRE+2*j}:{VRE+2*j+1}], v{VRS}, {srd(R_WS)}, s{S_RS} offen offset:{j*1024} sc1' for j in range(4)]
          + [f's_add_u32 s64, s{S_RS}, 4096', f'buffer_load_dwordx2 v[{VRE+8}:{VRE+9}], v{VRS}, {srd(R_WS)}, s64 offen sc1'],
          [est[6 if cfg.rdot else 5] + 8] * 5, [PH2 + (30 if cfg.rdot else -8) - cfg.lh] * 5, True, 'r')
    t, dens = yds([j[:2] for j in jobs])
    last = -1; at = {}
    for i in sorted(range(len(jobs)), key=lambda i: (t[i], i)):
        s = int(t[i] + 0.5)
        if s < N1 - 12 and s % 2 == 0: s += 1
        s = max(s, last + 1, jobs[i][0]); last = s
        S.put(s, jobs[i][2], jobs[i][3]); at.setdefault(jobs[i][4], []).append(s)
    sl = [at[f'a{i}'][0] for i in range(56)]
    assert all(sl[i] < fu[i] - 8 for i in range(56))
    if cfg.verbose: print('density', sorted(dens)); print({x: y for x, y in at.items() if x[0] != 'a'})
    S.spread(g2_addr(), 252, 262)
    for u in range(7):
        a, b = max(E[u], lo[u]), min(E[u + 1], hi[u])
        rho = S.spread(epi(u)[:-2], a, b, keep=True)
        if cfg.verbose: print('epi', u, a, b, round(rho, 2), est[u])
    assert all(kp for i in range(U6, N1) for g, kp in S.vm[i])
    first = []
    for gi, g in enumerate([(i, i + 1) for i in range(0, 8 * P1, 2)] + [tuple(range(i, i + nq)) for i in range(8 * P1, 56, nq)]):
        r = [RBS[f % NR] + 3 for f in g]; L = k.lab('ar')
        c = [f'v_max_u32 v{VSD}, v{r[0]}, v{r[1]}'] + ([f'v_max3_u32 v{VSD}, v{VSD}, v{r[2]}, v{r[3]}'] if len(g) == 4 else []) + [f'v_cmp_eq_u32 vcc, -1, v{VSD}']
        br = [f's_cbranch_vccnz {L}', f'{L}_b:']
        k.tail += [f'{L}:', 's_mov_b32 s65, 0'] + ([f's_bitset1_b32 s94, {gi}'] if cfg.rc else []) + [f'{L}_l:'] + (['s_add_u32 s95, s95, 1'] if cfg.rc else []) + [ald(f) for f in g] + ['s_add_u32 s65, s65, 1', 's_waitcnt vmcnt(0)'] + c + \
                  ['s_cmp_gt_u32 s65, 0x40000', f's_cbranch_scc1 {L}_b', f's_cbranch_vccnz {L}_l', f's_branch {L}_b']
        s0 = min(fu[f] for f in g)
        if s0 == N1: first = c + br
        else: S.put(s0 - 2, c); S.put(s0 - 1, br)
    if cfg.verbose:
        print('act loads', sl)
        print('vm per 20 slots', [sum(1 for i in range(a, min(a + 20, n)) if S.vm[i]) for a in range(0, n, 20)])
    VRE = 64 if cfg.rdot else VPB
    un = [x for r in range(10) for x in (f'v_lshlrev_b32 v{VT+2*r}, 16, v{VPB+r}', f'v_and_b32 v{VT+2*r+1}, 0xffff0000, v{VPB+r}')]
    if not cfg.rdot: S.spread(un, PH2 - 8, PH2 + 22)
    else: S.put(PH2 - 20, ['s_movk_i32 s72, 0x3f80', 's_mov_b32 s73, 0x3f800000'])
    assert est[6] < PH2
    step = 5 * nq
    for b in range(3):
        s = PH2 + step * b
        S.put(s + 1, [f's_add_u32 s64, s{S_WAVE}, {b+1}', 's_and_b32 s64, s64, 3', f's_mul_i32 s64, s64, {PW}', f'v_add_u32 v{VPW}, s64, v{VL0}'])
        for j in range(5):
            A = ACC2 + 20 * b + 4 * j
            S.put(s + nq * j + nq + 1, [f';@tag pw{b}', f'ds_write_b128 v{VPW}, v[{A}:{A+3}] offset:{b*5120 + j*1024}'])
        s += step + 5
        P = VT if cfg.rdot and b == 0 else VPB
        S.put(s, [f';@waitlg pw{b}', 's_barrier', f'ds_read_b128 v[{P}:{P+3}], v{VPR} offset:{b*5120}'])
        for j in range(1, 5): S.put(s + (j + 1) // 2, [f'ds_read_b128 v[{P+4*j}:{P+4*j+3}], v{VPR} offset:{b*5120 + j*1024}'])
        if P == VT: S.spread([f'v_dot2_f32_bf16 v{VT+r}, v{VRE+r//2}, s{72+r%2}, v{VT+r}' for r in range(20)], s + 7, s + step - 3)
        else: S.spread([f'v_add_f32 v{VT+r}, v{VT+r}, v{VPB+r}' for r in range(20)], s + 7, s + step - 3)
    for b in range(3):
        for e in range(2):
            for l in rdA(b, e): k(l)
    for g in swaps(0): k(g[0])
    LA, LJ = k.lab('u7'), k.lab('uj')
    for b in range(nb):
        M = mf1(b)
        for x in range(4):
            i = 4 * b + x
            if i == U6:
                k(f's_and_b32 s64, s{S_C}, 3\ns_cmp_eq_u32 s64, 3\ns_cbranch_scc0 {LA}\n;@push\ns_waitcnt lgkmcnt(0)')
                L = [l for ii in range(U6, N1) for l in S.lines(ii, S.vm, True) + S.lines(ii, S.ot, True)]
                for l in relabel(L, '_b'): k(l)
                k(f's_branch {LJ}\n;@pop\n{LA}:')
            lstamp(k, i)
            for l in pre[i]: k(l)
            if x == 0: k(f';@waitlg b{b + 1 if cfg.w2 and b % 2 == 0 and 63 <= b < nb - 1 else b}')
            k(M[x])
            for l in S.lines(i, S.vm): k(l)
            if x % 2 == 0 and b + 3 < nb:
                for l in rdA(b + 3, x // 2): k(l)
            for l in S.lines(i, S.ot): k(l)
            if i == 239: stamp(k, 12)
    k(f'{LJ}:')
    stamp(k, 13)
    for l in first: k(l)
    started = set()
    for x, (f, j) in enumerate(g2):
        i = N1 + x; jj, b, p = afr[f]; A = ACC2 + 20 * b + 4 * j
        if i == PH2: stamp(k, 14)
        lstamp(k, i)
        k(f'{MF} v[{A}:{A+3}], {wreg(5*(2*jj+p)+j)}, {rb(f)}, ' + (f'v[{A}:{A+3}]' if A in started else '0'))
        started.add(A)
        for l in S.lines(i, S.vm) + S.lines(i, S.ot): k(l)
    for i in range(n, n + 8):
        for l in S.lines(i, S.vm) + S.lines(i, S.ot): k(l)
    stamp(k, 15); lstamp(k, n)
    A = ACC2 + 60
    for j in range(5):
        for r in range(4): k(f'v_add_f32 v{VT+4*j+r}, v{VT+4*j+r}, v{A+4*j+r}')
        for r in range(2): k(f'v_cvt_pk_bf16_f32 v{VPB+2*j+r}, v{VT+4*j+2*r}, v{VT+4*j+2*r+1}')
        if j % 2:
            o = VPB + 2 * j - 2
            k(f'''v_permlane16_swap_b32 v{o}, v{o+2}
            v_permlane16_swap_b32 v{o+1}, v{o+3}
            buffer_store_dwordx4 v[{o}:{o+3}], v{VO1}, {srd(R_OUT)}, s{S_OO} offen offset:{(j-1)*32}''')
    k(f'buffer_store_dwordx2 v[{VPB+8}:{VPB+9}], v{VO2}, {srd(R_OUT)}, s{S_OO} offen offset:128')
    if cfg.prof:
        k('s_waitcnt vmcnt(0)'); stamp(k, 9)
```

```python
from common import *
NPRE = 54
def wreg(q):
    if q < NPRE: return f'a[{252-4*q}:{255-4*q}]'
    if q < NPRE + 10: r = 4 * (q - NPRE); return f'a[{r}:{r+3}]'
    return wreg(q - NPRE - 10)
def ids(k):
    k(f'''s_lshr_b32 s64, s{S_XCD}, 1
    s_and_b32 s65, s{S_I}, 3
    s_sub_u32 s65, 3, s65
    s_lshl_b32 s65, s65, 2
    s_add_u32 s{S_RB}, s64, s65
    s_and_b32 s64, s{S_XCD}, 1
    s_lshl_b32 s{S_TB}, s{S_RB}, 1
    s_add_u32 s{S_TB}, s{S_TB}, s64
    s_lshl_b32 s64, s64, 3
    s_lshr_b32 s{S_CB}, s{S_I}, 2
    s_add_u32 s{S_C}, s64, s{S_CB}
    s_mul_i32 s64, s{S_C}, 7
    s_lshr_b32 s65, s{S_C}, 2
    s_sub_u32 s{S_U0}, s64, s65
    s_mul_i32 s{S_WB}, s{S_U0}, {41*1024}
    s_lshl_b32 s{S_W12}, s{S_WAVE}, 12
    s_add_u32 s{S_WB}, s{S_WB}, s{S_W12}
    s_add_u32 s{S_WB}, s{S_WB}, {hex(WS_WP)}
    s_mul_i32 s65, s{S_WAVE}, 14
    s_mul_i32 s64, s65, 40960
    s_mul_i32 s25, s{S_CB}, 5120
    s_add_u32 s{S_WDB}, s64, s25
    v_add_u32 v{VWA}, s{S_WDB}, v{VL0}
    s_movk_i32 s100, 4096
    v_min_u32 v{VFD}, 13, v1
    v_add_u32 v{VFD}, s65, v{VFD}
    v_lshlrev_b32 v{VFD}, {cfg.fw}, v{VFD}
    s_lshr_b32 s64, s{S_U0}, 2
    s_mul_i32 s64, s64, 14
    s_add_u32 s25, s{S_U0}, 6
    s_lshr_b32 s25, s25, 2
    s_min_u32 s25, s25, 26
    s_mul_i32 s25, s25, 14
    s_add_u32 s25, s25, 13
    v_add_u32 v{VFW}, s64, v1
    v_min_u32 v{VFW}, s25, v{VFW}
    v_lshlrev_b32 v{VFW}, {cfg.fw}, v{VFW}
    s_mov_b32 s{S_FW}, {hex(WS_FLAGW)}
    s_mov_b32 s{S_FD}, {hex(WS_FLAGD)}
    v_bfe_u32 v4, v1, 4, 1
    v_mul_u32_u24 v{VST}, {AST}, v4
    v_and_b32 v4, 15, v1
    v_lshl_add_u32 v{VST}, v4, 5, v{VST}
    v_lshrrev_b32 v4, 5, v1
    v_lshl_add_u32 v{VST}, v4, 4, v{VST}
    s_lshl_b32 s64, s{S_RB}, 3
    s_lshl_b32 s65, s{S_WAVE}, 1
    s_add_u32 s64, s64, s65
    s_mul_i32 s{S_AS}, s64, {AST}
    s_lshl_b32 s65, s{S_U0}, 9
    s_add_u32 s{S_AS}, s{S_AS}, s65
    s_add_u32 s{S_AS}, s{S_AS}, {hex(WS_ACT)}
    s_and_b32 s65, s{S_C}, 3
    s_cmp_eq_u32 s65, 3
    s_cselect_b32 s{S_A6}, {hex(OOB)}, s{S_AS}''')
    for i in range(4): k(f'v_mov_b32 v{VNEG+i}, -1')
    k.srd(R_A, 56 * 40960, base=S_WS, off=WS_WDP)
    k.srd(R_B, 128 * AST, base=S_WS, off=WS_ACT)
def flag_load(so, va, vd=VFX, off=0): return [f'buffer_load_dword v{vd}, v{va}, {srd(R_WS)}, s{so} offen offset:{off} sc1']
def flag_wait(k, so, va, vd=VFX, off=0, cnt=26):
    L = k.lab('fw'); q = Buf()
    q(f'''v_cmp_ne_u32 vcc, s{S_TAG}, v{vd}
    s_mov_b32 s{cnt}, 0
    s_cbranch_vccz {L}_ok
    ;@push
    {L}:
    {flag_load(so, va, vd, off)[0]}
    s_add_u32 s{cnt}, s{cnt}, 1
    s_waitcnt vmcnt(0)
    v_cmp_ne_u32 vcc, s{S_TAG}, v{vd}
    s_cmp_gt_u32 s{cnt}, 0x40000
    s_cbranch_scc1 {L}_ok
    s_cbranch_vccnz {L}
    ;@pop
    {L}_ok:''')
    return q.L
def dma_round(R, each=False):
    o = [f's_add_u32 s27, s{S_WB}, {R*16384}']
    for p in range(4): o += ([f's_add_u32 m0, s{S_W12}, {(R % 9)*16384}'] if each or p == 0 else []) + [f';@tag r{R}', f'buffer_load_dwordx4 v{VL0}, {srd(R_WS)}, s27 offen offset:{p*1024} sc1 lds']
    return o
def wd_loads(q0, q1):
    o = []
    for q in range(q0, q1):
        kk, j = divmod(q, 5)
        o.append(f'buffer_load_dwordx4 {wreg(q)}, v{VWA}, {srd(R_A)}, ' + (f'0 offen offset:{j*1024} sc1' if j < 4 else 's100 offen sc1'))
        if j == 4 and kk < 13: o.append(f'v_add_u32 v{VWA}, 40960, v{VWA}')
    return o
def act_store(u, r): return f'buffer_store_dwordx4 v[{r}:{r+3}], v{VST}, {srd(R_WS)}, s{S_A6 if u == 6 else S_AS} offen offset:{u*512} sc1'
def act_pre(): return [act_store(u, VNEG) for u in range(7)]
LATE = [[55, 56, 57, 58], [60, 61, 62, 63], [65, 66, 67, 68], [54, 59, 64, 69]]
def wd_dma(g):
    o = [f's_add_u32 m0, s{S_W12}, {g*16384}']
    for p, q in enumerate(LATE[g]):
        kk, j = divmod(q, 5)
        if p == 0 or g == 3: o.append(f's_add_u32 s27, s{S_WDB}, {kk*40960 + j*1024 - p*1024}')
        o += [f';@tag x{g}', f'buffer_load_dwordx4 v{VL0}, {srd(R_A)}, s27 offen offset:{p*1024} sc1 lds']
    return o
```

```python
from common import *
def prologue(k, end_label):
    n = k.name
    k(f'''s_cmp_ge_u32 s2, 256
    s_cbranch_scc1 {end_label}
    s_load_dwordx16 s[4:19], s[0:1], 0
    s_load_dwordx16 s[20:35], s[0:1], 64
    s_getpc_b64 s[62:63]
    {n}_pc0:
    s_lshr_b32 s{S_I}, s2, 3
    s_and_b32 s{S_XCD}, s2, 7
    v_lshrrev_b32 v2, 6, v0
    v_and_b32 v1, 63, v0
    s_lshl_b32 s64, s{S_I}, 12
    v_lshl_add_u32 v4, v0, 4, s64
    v_readfirstlane_b32 s{S_WAVE}, v2
    v_min_u32 v4, {n}_last-{n}_pc0-16, v4
    v_mov_b32 v5, s63
    v_add_co_u32 v250, vcc, s62, v4
    v_addc_co_u32 v251, vcc, 0, v5, vcc''')
    prof_init(k)
    k(f'''v_lshrrev_b32 v16, 5, v0
    s_lshl_b32 s64, s2, 3
    v_add_u32 v14, s64, v16
    s_movk_i32 s65, 1280
    v_mul_lo_u32 v2, v14, s65
    v_and_b32 v17, 31, v0
    v_lshl_add_u32 v15, v17, 3, v2
    v_lshl_add_u32 v2, v17, 4, v2
    v_mov_b32 v3, 0
    s_waitcnt lgkmcnt(0)''')
    k.srd(R_X, T * D * 2, base=S_X)
    k.srd(R_WS, WS_SIZE, base=S_WS)
    k(f'''buffer_load_dwordx4 v[4:7], v2, {srd(R_X)}, 0 offen
    buffer_load_dwordx4 v[8:11], v2, {srd(R_X)}, 0 offen offset:512
    buffer_load_dwordx2 v[12:13], v15, {srd(R_X)}, 0 offen offset:1024
    buffer_load_dword v3, v3, {srd(R_WS)}, 0 offen sc1
    global_load_dwordx4 v[252:255], v[250:251], off''')
    k.srd(R_OUT, T * D * 2, base=S_OUT)
    k(f'''v_lshlrev_b32 v19, 2, v16
    v_add_u32 v19, {STG + SXO}, v19
    v_mul_u32_u24 v14, {SPITCH}, v16
    v_add_u32 v14, {STG}, v14
    v_lshl_add_u32 v18, v17, 3, v14
    v_lshl_add_u32 v14, v17, 4, v14
    v_bfe_u32 v92, v1, 2, 2
    v_and_b32 v16, 1, v1
    v_lshl_add_u32 v92, v16, 2, v92
    v_mul_u32_u24 v92, {SPITCH}, v92
    v_bfe_u32 v16, v1, 1, 1
    v_lshl_add_u32 v92, v16, 3, v92
    v_lshrrev_b32 v17, 4, v1
    v_lshl_add_u32 v92, v17, 4, v92
    v_lshrrev_b32 v17, 3, v1
    v_mul_u32_u24 v140, {CGS}, v17
    v_and_b32 v16, 7, v1
    v_lshl_add_u32 v140, v16, 4, v140
    v_lshlrev_b32 v94, 2, v16
    v_add_u32 v94, {STG + SXO}, v94
    s_mul_i32 s64, s{S_WAVE}, 320
    s_add_u32 s64, s64, {STG}
    v_add_u32 v92, s64, v92
    s_mul_i32 s78, s{S_WAVE}, {40*CGS}
    s_lshl_b32 s64, s2, 7
    s_add_u32 s78, s78, s64
    s_add_u32 s78, s78, {hex(WS_UP)}
    v_mov_b32 v{VF0}, {hex(OOB)}
    v_cmp_ne_u32 vcc, 0, v1
    v_cndmask_b32 v{VF0}, 0, v{VF0}, vcc''')
    stamp(k, 0)
G = 120
def ln1(k):
    k(f'''s_mov_b32 s62, 0x3f803f80
    v_mov_b32 v16, 0
    v_mov_b32 v17, 0''')
    if cfg.fine: k('s_waitcnt vmcnt(%d)' % cfg.fine_n); stamp(k, 9)
    for r in range(4, 14):
        if r == 4: k(f'ds_write_b128 v14, v[4:7]')
        if r == 8: k(f'ds_write_b128 v14, v[8:11] offset:512')
        if r == 12: k(f'ds_write_b64 v18, v[12:13] offset:1024')
        k(f'v_dot2_f32_bf16 v16, v{r}, s62, v16\nv_dot2_f32_bf16 v17, v{r}, v{r}, v17')
    k(f's_mov_b32 s63, 1664525\nv_mul_lo_u32 v3, v3, s63\nv_lshlrev_b32 v{VL0+0 if False else 60}, 4, v1')
    for sh in (8, 4, 2, 1):
        k(f'v_add_f32 v16, v16, v16 row_ror:{sh}\nv_add_f32 v17, v17, v17 row_ror:{sh}')
        if sh == 8: k(f'v_add_u32 v{G+3}, 1013904223, v3')
        if sh == 4: k(f'v_mov_b32 v{VL0}, v60')
        if sh == 2: k(f'v_mov_b32 v{VTAG}, v{G+3}')
    k(f'''v_mov_b32 v60, v16
    v_mov_b32 v61, v17
    v_readfirstlane_b32 s{S_TAG}, v{G+3}
    v_permlane16_swap_b32 v16, v60
    v_permlane16_swap_b32 v17, v61
    v_add_f32 v16, v16, v60
    v_add_f32 v17, v17, v61
    v_mul_f32 v16, {fl(1/D)}, v16
    v_mul_f32 v17, {fl(1/D)}, v17
    v_fma_f32 v17, -v16, v16, v17
    v_max_f32 v17, 0, v17
    v_cvt_pk_bf16_f32 v17, v17, v17
    v_and_b32 v17, 0xffff0000, v17
    v_add_f32 v17, {fl(1e-5)}, v17
    v_cvt_pk_bf16_f32 v17, v17, v17
    v_and_b32 v17, 0xffff0000, v17
    v_sqrt_f32 v17, v17
    s_mov_b32 s62, 1
    s_mov_b32 s63, 1
    v_cvt_pk_bf16_f32 v17, v16, v17
    s_mov_b64 exec, s[62:63]
    ds_write_b32 v19, v17
    s_mov_b64 exec, -1''')
    for i in range(1, 5): k(f'v_mov_b32 v{G+3+4*i}, v{G+3}')
    k('s_waitcnt lgkmcnt(0)')
    if cfg.fine: stamp(k, 10)
    k('s_barrier')
    for r in range(5):
        k(f'ds_read_b64_tr_b16 v[{G+4*r}:{G+4*r+1}], v92 offset:{64*r}\nds_read_b32 v{G+4*r+2}, v94')
    return [[f'buffer_store_dwordx4 v[{G+4*r}:{G+4*r+3}], v140, {srd(R_WS)}, s78 offen sc1'] + ([f's_add_u32 s78, s78, {8*CGS}'] if r < 4 else []) for r in range(5)]
def flag_store(sreg, off=0): return [f'buffer_store_dword v{VTAG}, v{VF0}, {srd(R_WS)}, s{sreg} offen offset:{off} sc1']
```

```python
from common import *
from p_pro import ln1, flag_store
import p_pre
WST = 12288
DL0 = 4 * WST
S_G, S_M, S_TAU, S_WT, S_WSO, S_LW = 68, 69, 70, 71, 72, 73
S_KK, S_DSO, S_LD = 74, 75, 76
VWL, VWT, VDL = 20, 21, 22
def w_load(i): return [f's_add_u32 m0, s{S_LW}, {i*1024}', f';@tag w{i//4}', f'buffer_load_dwordx4 v{VWL}, {srd(R_A)}, s{S_WSO} offen lds',
                       f's_add_u32 s{S_WSO}, s{S_WSO}, {8*3456}']
def repack_wg(k):
    L = lambda p: k.lab(p)
    k(f'''s_mul_i32 s{S_CG}, s{S_XCD}, 12
    s_mul_i32 s64, s64, 3
    s_sub_u32 s65, s65, 1
    s_mul_i32 s65, s65, s66
    s_add_u32 s{S_KK}, s64, s65
    s_add_u32 s{S_CG}, s{S_CG}, s{S_KK}
    s_lshl_b32 s{S_WT}, s{S_CG}, 2
    s_add_u32 s{S_WT}, s{S_WT}, s{S_WAVE}
    s_mul_i32 s{S_G}, s{S_WT}, 4682
    s_lshr_b32 s{S_G}, s{S_G}, 16
    s_mul_i32 s64, s{S_G}, 14
    s_sub_u32 s64, s{S_WT}, s64
    s_and_b32 s{S_M}, s64, 1
    s_lshr_b32 s{S_TAU}, s64, 1
    s_cmp_eq_u32 s{S_M}, 0
    s_cselect_b32 s{R_A}, s{S_WG}, s{S_WU}
    s_cselect_b32 s{R_A+1}, s{S_WG+1}, s{S_WU+1}
    s_mov_b32 s{R_A+2}, {D*F*2}
    s_mov_b32 s{R_A+3}, 0x00020000
    s_mul_i32 s{S_WSO}, s{S_TAU}, {96*3456}
    s_lshl_b32 s64, s{S_G}, 7
    s_add_u32 s{S_WSO}, s{S_WSO}, s64
    s_cmp_ge_u32 s{S_WT}, 378
    s_cselect_b32 s{S_WSO}, {hex(OOB)}, s{S_WSO}
    s_mul_i32 s{S_LW}, s{S_WAVE}, {WST}
    v_lshrrev_b32 v21, 3, v1
    v_mul_u32_u24 v{VWL}, 3456, v21
    v_and_b32 v21, 6, v21
    v_and_b32 v22, 7, v1
    v_xor_b32 v21, v21, v22
    v_lshl_add_u32 v{VWL}, v21, 4, v{VWL}''')
    assert all((w * 4682) >> 16 == w // 14 for w in range(384))
    for i in range(cfg.nw0):
        for l in w_load(i): k(l)
    cfg.fine_n = 2 + cfg.nw0
    ups = ln1(k); wi = cfg.nw0
    for c in cfg.rord:
        if c == 'u': L_ = ups.pop(0)
        elif wi < 12: L_ = w_load(wi); wi += 1
        else: L_ = []
        for l in L_: k(l)
    assert wi == 12 and not ups
    stamp(k, 1)
    k.srd(R_B, D * F * 2, base=S_WD)
    k(f'''s_mul_i32 s64, s{S_XCD}, 7
    s_add_u32 s77, s64, s{S_KK}
    s_lshr_b32 s64, s{S_XCD}, 1
    s_mul_i32 s65, s64, 14
    s_sub_u32 s65, s77, s65
    s_mul_i32 s64, s64, 27
    s_and_b32 s66, s65, 1
    s_mul_i32 s66, s66, 14
    s_add_u32 s64, s64, s66
    s_lshr_b32 s66, s65, 1
    s_add_u32 s64, s64, s66
    s_cmp_eq_u32 s65, 13
    s_cselect_b32 s66, 0, 7
    s_lshr_b32 s65, s{S_WAVE}, 1
    s_mul_i32 s66, s66, s65
    s_add_u32 s64, s64, s66
    s_lshl_b32 s64, s64, 1
    s_and_b32 s65, s{S_WAVE}, 1
    s_add_u32 s64, s64, s65
    s_mul_i32 s{S_DSO}, s64, 10240
    s_cmp_ge_u32 s{S_KK}, 7
    s_cselect_b32 s{S_DSO}, {hex(OOB)}, s{S_DSO}
    s_lshl_b32 s79, s65, 2
    s_mul_i32 s{S_LD}, s{S_WAVE}, 10240
    s_add_u32 s{S_LD}, s{S_LD}, {DL0}''')
    def wd_raw():
        for i in range(10):
            t = 56 + (i & 1) * 2
            k(f'''v_add_u32 v{t}, {64*i}, v1
            v_mul_u32_u24 v{t+1}, 205, v{t}
            v_bfe_u32 v{t+1}, v{t+1}, 14, 2
            v_or_b32 v{t+1}, s79, v{t+1}
            v_lshlrev_b32 v{t+1}, 5, v{t+1}
            v_lshlrev_b32 v{t}, 4, v{t}
            v_xor_b32 v{t}, v{t}, v{t+1}
            s_add_u32 m0, s{S_LD}, {i*1024}
            buffer_load_dwordx4 v{t}, {srd(R_B)}, s{S_DSO} offen lds''')
    if not cfg.wdl: wd_raw()
    stamp(k, 2)
    lw = L('wx')
    for uu in range(4):
        k(f'''s_lshl_b32 s64, s{S_G}, 2
        s_add_u32 s64, s64, {uu}
        s_mul_i32 s65, s64, 19
        s_lshr_b32 s65, s65, 9
        s_mul_i32 s66, s65, 27
        s_sub_u32 s66, s64, s66
        s_mul_i32 s66, s66, 37
        s_lshr_b32 s66, s66, 8
        s_lshl_b32 s65, s65, 2
        s_add_u32 s65, s65, s66
        s_and_b32 s65, s65, 7
        s_lshl_b32 s65, s65, 2
        s_mul_i32 s66, s{S_TAU}, 6
        s_add_u32 s66, s66, s{S_M}
        s_add_u32 s66, s66, 40
        s_sub_u32 s66, s66, s65
        s_mul_i32 s64, s64, 41''')
        for ks in range(3):
            k(f'''s_add_u32 s65, s66, {2*ks}
            s_cmp_ge_u32 s65, 40
            s_cselect_b32 s67, 40, 0
            s_sub_u32 s65, s65, s67
            s_add_u32 s65, s65, s64
            s_lshl_b32 s65, s65, 10
            s_add_u32 s{4+3*uu+ks}, s65, {hex(WS_WP)}''')
        k(f's_cmp_eq_u32 s{S_TAU}, 6\ns_cselect_b32 s{6+3*uu}, {hex(OOB)}, s{6+3*uu}\ns_cmp_ge_u32 s{S_WT}, 378')
        for ks in range(3): k(f's_cselect_b32 s{4+3*uu+ks}, {hex(OOB)}, s{4+3*uu+ks}')
    assert all((u * 19) >> 9 == u // 27 for u in range(108)) and all((u * 37) >> 8 == u // 7 for u in range(27))
    k(f'''v_lshrrev_b32 v24, 2, v1
    v_lshlrev_b32 v25, 7, v24
    v_and_b32 v26, 3, v1
    v_lshl_add_u32 v25, v26, 3, v25
    v_add_u32 v25, s{S_LW}, v25
    v_bfe_u32 v24, v1, 3, 2
    v_bfe_u32 v26, v1, 2, 2
    v_mov_b32 v27, 0x3f803f80''')
    for uu in range(4):
        k(f'''v_xor_b32 v23, {uu}, v24
        v_lshl_add_u32 v{28+uu}, v23, 5, v25
        v_cmp_eq_u32 vcc, {uu}, v26
        v_cndmask_b32 v{32+4*uu}, 0, v27, vcc''')
        for r in range(1, 4): k(f'v_mov_b32 v{32+4*uu+r}, v{32+4*uu}')
    k(f'''v_lshrrev_b32 v24, 4, v1
    v_mul_u32_u24 v24, {41*1024}, v24
    v_and_b32 v26, 15, v1
    v_lshl_add_u32 v24, v26, 2, v24
    s_mul_i32 s64, s{S_G}, {4*41*1024}
    s_lshl_b32 s65, s{S_M}, 9
    s_add_u32 s64, s64, s65
    s_lshl_b32 s65, s{S_TAU}, 6
    s_add_u32 s64, s64, s65
    s_add_u32 s64, s64, {hex(WS_WP + 40*1024)}
    s_cmp_ge_u32 s{S_WT}, 378
    s_cselect_b32 s64, {hex(OOB)}, s64
    s_cmp_eq_u32 s{S_TAU}, 6
    s_cselect_b32 s65, s64, {hex(OOB)}
    s_lshl_b32 s66, s{S_WT}, {cfg.fw}
    s_add_u32 s66, s66, {hex(WS_FLAGW)}''')
    for ks in range(3):
        k(f';@waitvm w{ks}')
        if cfg.fine: stamp(k, 11 + ks)
        for uu in range(4):
            fr = 96 + 16 * ks + 4 * uu
            for q in range(2): k(f'ds_read_b64_tr_b16 v[{fr+2*q}:{fr+2*q+1}], v{28+uu} offset:{ks*4096 + q*2048}')
        for uu in range(4):
            fr = 96 + 16 * ks + 4 * uu
            k(f'buffer_store_dwordx4 v[{fr}:{fr+3}], v{VL0}, {srd(R_WS)}, s{4+3*uu+ks} offen sc1')
            k(f'v_mfma_f32_16x16x32_bf16 v[48:51], v[{32+4*uu}:{35+4*uu}], v[{fr}:{fr+3}], ' + ('0' if ks == 0 and uu == 0 else 'v[48:51]'))
    k(f'''v_cvt_pk_bf16_f32 v52, v48, v48
    v_and_b32 v52, 0xffff0000, v52
    v_sub_f32 v53, v48, v52
    v_cvt_pk_bf16_f32 v52, v52, v53
    v_mov_b32 v53, 0
    buffer_store_dword v52, v24, {srd(R_WS)}, s64 offen sc1
    buffer_store_dword v53, v24, {srd(R_WS)}, s65 offen offset:64 sc1''')
    if cfg.wdl: wd_raw()
    for l in flag_store(66): k(l)
    stamp(k, 3)
    ld = L('dx')
    k(f'''s_cmp_ge_u32 s{S_KK}, 7
    s_cbranch_scc1 {ld}
    ;@push
    v_lshrrev_b32 v24, 4, v1
    v_mul_u32_u24 v25, 10240, v24
    v_bfe_u32 v26, v1, 2, 2
    v_mul_u32_u24 v27, 1280, v26
    v_add_u32 v25, v25, v27
    v_and_b32 v27, 3, v1
    v_lshl_add_u32 v25, v27, 3, v25
    v_and_b32 v24, 1, v24
    v_lshl_or_b32 v24, v24, 2, v26
    s_lshl_b32 s64, s{S_WAVE}, 1
    v_xor_b32 v24, s64, v24
    v_lshl_add_u32 v25, v24, 5, v25
    v_add_u32 v25, {DL0}, v25
    v_xor_b32 v26, 32, v25
    s_mul_i32 s64, s77, 40960
    s_lshl_b32 s65, s{S_WAVE}, 11
    s_add_u32 s64, s64, s65
    s_add_u32 s64, s64, {hex(WS_WDP)}
    s_waitcnt vmcnt(1)
    s_barrier''')
    for a in range(5):
        for e in range(2):
            r = 96 + 8 * a + 4 * e
            for q in range(2): k(f'ds_read_b64_tr_b16 v[{r+2*q}:{r+2*q+1}], v{25+e} offset:{a*256 + q*5120}')
    for a in range(5):
        for e in range(2):
            r = 96 + 8 * a + 4 * e
            k(f'buffer_store_dwordx4 v[{r}:{r+3}], v{VL0}, {srd(R_WS)}, s64 offen offset:{e*1024} sc1')
        if a < 4: k('s_add_u32 s64, s64, 8192')
    k(f'''s_lshl_b32 s66, s77, {cfg.fw}
    s_add_u32 s66, s66, {hex(WS_FLAGD)}
    s_cmp_eq_u32 s{S_WAVE}, 0
    s_cselect_b32 s66, s66, {hex(OOB)}
    s_waitcnt vmcnt(0)
    s_barrier''')
    for l in flag_store(66): k(l)
    k(f';@pop\n{ld}:\ns_barrier\n;@forget')
    stamp(k, 4)
    p_pre.ids(k)
    for l in p_pre.act_pre(): k(l)
    for l in p_pre.flag_load(S_FW, VFW) + p_pre.flag_wait(k, S_FW, VFW): k(l)
    stamp(k, 5)
    for R in range(9):
        for l in p_pre.dma_round(R): k(l)
    for l in p_pre.flag_load(S_FD, VFD) + p_pre.flag_wait(k, S_FD, VFD): k(l)
    stamp(k, 6)
    for l in p_pre.wd_loads(0, cfg.nc1 + cfg.nc2): k(l)
```

```python
import sys
from common import *
import asmpass, p_pro, p_conv
NAME = 'sequential_preLN__ssm_conv_s4__geglu_ffn__prompt_kernel'
def gen(path, **opt):
    for a, b in opt.items(): setattr(cfg, a, b)
    k = Kern(NAME, 256, 256, LDS_TOTAL, vgpr=256, agpr=256)
    k.tail = []
    END, FIN, REP, JOIN = NAME + '_end', NAME + '_fin', NAME + '_rep', NAME + '_join'
    p_pro.prologue(k, END)
    k(f'''s_lshr_b32 s64, s{S_I}, 2
    s_and_b32 s65, s{S_I}, 3
    s_and_b32 s66, s64, 1
    s_lshr_b32 s64, s64, 1
    s_add_u32 s67, s65, s66
    s_cmp_ge_u32 s67, 3
    s_cbranch_scc1 {REP}''')
    pre = list(k.L)
    p_conv.conv_wg(k)
    k(f's_branch {JOIN}')
    partA = k.L; k.L = []
    k(f'{REP}:')
    if cfg.stop == 'conv':
        for g in p_pro.ln1(k):
            for l in g: k(l)
    else:
        import p_rep
        p_rep.repack_wg(k)
    partB = k.L; k.L = []
    k(f'{JOIN}:')
    if cfg.stop not in ('conv', 'rep'):
        import p_g
        p_g.gemms(k)
    else: k('s_waitcnt vmcnt(0)')
    prof_store(k)
    k(f'{END}:\ns_endpgm')
    partC = k.L; k.L = []
    for l in k.tail: k(l)
    k(f'{NAME}_last:')
    partD = k.L
    st = {}
    A = asmpass.run(partA, stats=st); sa = dict(st)
    AB = asmpass.run(pre + [';@cut'] + partB, stats=st); sb = dict(st)
    B = AB[AB.index(';@cut') + 1:]
    C = asmpass.run(partC, stats=st)
    k.L = A + B + C + asmpass.run(partD)
    open(path, 'w').write(build([k], single=True))
    print(path, 'lines', len(k.L), sa, sb, st)
if __name__ == '__main__':
    path = sys.argv[1]
    opt = {}
    for a in sys.argv[2:]:
        if '=' in a:
            x, y = a.split('='); opt[x] = int(y) if y.lstrip('-').isdigit() else y
        else: opt[a] = True
    gen(path, **opt)
```
